```python
import torch

def _softmax(x, axis=-1):
    return torch.softmax(x, dim=axis)

def _gelu(x):
    return torch.nn.functional.gelu(x, approximate='tanh')

def _silu(x):
    return torch.nn.functional.silu(x)

def _sigmoid(x):
    return torch.sigmoid(x)

def _layernorm(x, axis=-1, eps=1e-05):
    m = x.mean(dim=axis, keepdim=True)
    v = x.var(dim=axis, keepdim=True, unbiased=False)
    return (x - m) / torch.sqrt(v + eps)

def _scatter_add(tgt, idx, src, axis=0):
    return tgt.clone().index_add_(axis, idx, src)

def _segment_sum(src, seg, n):
    out = torch.zeros((n,) + src.shape[1:], dtype=src.dtype)
    return out.index_add_(0, seg, src)

def _pad(x, pw):
    flat = tuple((v for pair in reversed(pw) for v in pair))
    return torch.nn.functional.pad(x, flat)
kernel_name = 'sequential_preLN__memory_aug_recurrent_mem_tr__swiglu_ffn__prompt'

def setup_inputs():

    _w = lambda a: (lambda t: t.to(torch.bfloat16) if t.is_floating_point() else t)(torch.as_tensor(a))

    def _A_setup():
        B, S, Dm = (1, 2048, 640)
        H, Dh = (32, 128)
        M, seg = (8, 32)
        seg = min(seg, S)
        S = S // seg * seg
        return {'x': _w((lambda *s: torch.randn(*s, dtype=torch.bfloat16) * 0.05)(B, S, Dm)), 'mem0': _w((lambda *s: torch.randn(*s, dtype=torch.bfloat16) * 0.2)(B, M, Dm)), 'Wq': _w((lambda *s: torch.randn(*s, dtype=torch.bfloat16) * 1.6)(Dm, H, Dh) * Dm ** (-0.5)), 'Wk': _w((lambda *s: torch.randn(*s, dtype=torch.bfloat16) * 1.6)(Dm, H, Dh) * Dm ** (-0.5)), 'Wv': _w((lambda *s: torch.randn(*s, dtype=torch.bfloat16) * 0.2)(Dm, H, Dh) * Dm ** (-0.5)), 'Wo': _w((lambda *s: torch.randn(*s, dtype=torch.bfloat16) * 0.2)(H, Dh, Dm) * (H * Dh) ** (-0.5)), 'seg_len': seg}
    _A_in = _A_setup()

    def _B_setup():
        B, S, D, F = (1, 2048, 640, 1728)
        return {'x': _w((lambda *s: torch.randn(*s, dtype=torch.bfloat16) * 0.05)(B, S, D)), 'w_gate': _w((lambda *s: torch.randn(*s, dtype=torch.bfloat16) * 0.05)(D, F)), 'w_up': _w((lambda *s: torch.randn(*s, dtype=torch.bfloat16) * 0.05)(D, F)), 'w_down': _w((lambda *s: torch.randn(*s, dtype=torch.bfloat16) * 0.05)(F, D))}
    _B_in = _B_setup()
    return {'A_x': _A_in['x'], 'A_mem0': _A_in['mem0'], 'A_Wq': _A_in['Wq'], 'A_Wk': _A_in['Wk'], 'A_Wv': _A_in['Wv'], 'A_Wo': _A_in['Wo'], 'A_seg_len': _A_in['seg_len'], 'B_x': _B_in['x'], 'B_w_gate': _B_in['w_gate'], 'B_w_up': _B_in['w_up'], 'B_w_down': _B_in['w_down']}

def reference(A_x, A_mem0, A_Wq, A_Wk, A_Wv, A_Wo, A_seg_len, B_x, B_w_gate, B_w_up, B_w_down):

    def _A_ref(x, mem0, Wq, Wk, Wv, Wo, seg_len):
        B, S, Dm = x.shape
        H, Dh = (Wq.shape[1], Wq.shape[2])
        M = mem0.shape[1]
        scale = Dh ** (-0.5)
        n_seg = S // seg_len
        L = M + seg_len
        idx = torch.arange(L)
        mask = (idx[:, None] < M) | (idx[:, None] >= idx[None, :])
        mem = mem0
        outs = []
        for s in range(n_seg):
            xs = x[:, s * seg_len:(s + 1) * seg_len, :].clone()
            h = torch.concatenate([mem, xs], axis=1)
            q = torch.einsum('btd,dhe->bhte', h, Wq)
            k = torch.einsum('btd,dhe->bhte', h, Wk)
            v = torch.einsum('btd,dhe->bhte', h, Wv)
            scores = torch.einsum('bhqe,bhke->bhqk', q, k) * scale
            scores = torch.where(mask[None, None], scores, -1000000000.0)
            p = _softmax(scores, axis=-1)
            o = torch.einsum('bhqk,bhke->bhqe', p, v)
            o = torch.einsum('bhte,hed->btd', o, Wo)
            mem = o[:, :M, :].clone()
            outs.append(o[:, M:, :])
        return torch.concatenate(outs, axis=1)

    def _B_ref(x, w_gate, w_up, w_down):
        g = _silu(x @ w_gate)
        u = x @ w_up
        return g * u @ w_down
    x = A_x
    h = x + _A_ref(_layernorm(x, axis=-1), A_mem0, A_Wq, A_Wk, A_Wv, A_Wo, A_seg_len)
    h2 = h + _B_ref(_layernorm(h, axis=-1), B_w_gate, B_w_up, B_w_down)
    return h2
```

```python
class Asm:
    def __init__(self):
        self.lines = []
        self._uid = 0
    def __call__(self, s):
        for part in s.split("\n"):
            part = part.strip()
            if part:
                self.lines.append("    " + part)
    def label(self, l):
        self.lines.append(l + ":")
    def raw(self, s):
        self.lines.append(s)
    def comment(self, s):
        self.lines.append("    ; " + s)
    def uid(self, p="L"):
        self._uid += 1
        return "%s_%d" % (p, self._uid)
    def text(self):
        return "\n".join(self.lines) + "\n"

def R(idx, cnt=1):
    if idx < 256:
        assert idx + cnt <= 256, (idx, cnt)
        p, b = "v", idx
    else:
        p, b = "a", idx - 256
        assert b + cnt <= 256
    if cnt == 1:
        return "%s%d" % (p, b)
    return "%s[%d:%d]" % (p, b, b + cnt - 1)
def V(i, cnt=1): return R(i, cnt)
def S(i, cnt=1):
    if cnt == 1: return "s%d" % i
    return "s[%d:%d]" % (i, i + cnt - 1)

KERNARG = dict(x=0, mem0=8, Wq=16, Wk=24, Wv=32, Wo=40, seg=48, Bx=56, Wg=64, Wu=72, Wd=80, out=88, dbg=96, ws=104)

def kernel_header(a, name):
    a.raw(".globl " + name)
    a.raw(".p2align 8")
    a.raw(".type %s,@function" % name)
    a.label(name)

def kernel_desc(name, vgpr=256, sgpr=102, accum=256):
    return "\n".join([
        ".amdhsa_kernel " + name,
        "  .amdhsa_next_free_vgpr %d" % vgpr,
        "  .amdhsa_next_free_sgpr %d" % sgpr,
        "  .amdhsa_accum_offset %d" % accum,
        "  .amdhsa_group_segment_fixed_size 0",
        "  .amdhsa_kernarg_size 112",
        "  .amdhsa_user_sgpr_count 2",
        "  .amdhsa_user_sgpr_kernarg_segment_ptr 1",
        "  .amdhsa_system_sgpr_workgroup_id_x 1",
        ".end_amdhsa_kernel"]) + "\n"

WS = dict(
    XN=0x0000000, Q=0x0400000, K=0x1400000, V=0x2400000, KM=0x3400000, VM=0x3C00000,
    O=0x4400000, H=0x5400000, HN=0x5800000, ACT=0x5C00000,
    PART=0x6400000, MEM=0x6500000, WL2=0x6600000, MEMOUT=0x7000000, FLAGS=0x7400000, HACC=0x7800000)
FLB = dict(KV=0, Q=16, O=32, H=48, L=64, G=80, PROG=96, TASK=128)
def FL(kind, i=0): return WS['FLAGS'] + (FLB[kind] + i) * 128

DB_WIN, DB_CBAR, DB_RT, DB_XQ, DB_LND, DB_KVQ = 32, 36, 40, 44, 128, 192
DB_WL = 72
DB_LQ = 76
```

```python
from asmlib import *
from k_gemm import add64, load_ptr, common_prologue

C_SCALE = 0x3e0293ee
import struct, math
def f2u(x): return struct.unpack("<I", struct.pack("<f", x))[0]
C_SCALE = f2u((128 ** -0.5) * math.log2(math.e))

def xmax_groups(a, x, t):
    a("v_mov_b32 %s, %s" % (V(t), V(x)))
    a("s_nop 1")
    a("v_permlane16_swap_b32 %s, %s" % (V(x), V(t)))
    a("v_max_f32 %s, %s, %s" % (V(x), V(x), V(t)))
    a("v_mov_b32 %s, %s" % (V(t), V(x)))
    a("s_nop 1")
    a("v_permlane32_swap_b32 %s, %s" % (V(x), V(t)))
    a("v_max_f32 %s, %s, %s" % (V(x), V(x), V(t)))

def attn_body(a):
    a("s_lshl_b32 s14, s12, 5"); a("s_add_u32 s14, s14, s13")
    a("s_lshl_b32 s15, s14, 13")
    add64(a, 20, 4, "0x%x" % WS['Q']); add64(a, 20, 20, "s15")
    add64(a, 22, 4, "0x%x" % WS['K']); add64(a, 22, 22, "s15")
    add64(a, 24, 4, "0x%x" % WS['V']); add64(a, 24, 24, "s15")
    a("s_lshl_b32 s15, s14, 12")
    add64(a, 26, 4, "0x%x" % WS['KM']); add64(a, 26, 26, "s15")
    a("s_lshl_b32 s15, s14, 11")
    add64(a, 28, 4, "0x%x" % WS['VM']); add64(a, 28, 28, "s15")
    a("v_lshlrev_b32 v3, 4, v2")
    a("v_add_u32 v4, 4096, v3")
    for qt in range(2):
        for st in range(4):
            a("global_load_dwordx4 v[%d:%d], v%d, s[20:21] offset:%d" % (16 + qt * 16 + st * 4, 19 + qt * 16 + st * 4, 3 + qt, st * 1024))
    for kt in range(2):
        for st in range(4):
            a("global_load_dwordx4 v[%d:%d], v%d, s[22:23] offset:%d" % (48 + kt * 16 + st * 4, 51 + kt * 16 + st * 4, 3 + kt, st * 1024))
    for st in range(4):
        a("global_load_dwordx4 v[%d:%d], v3, s[26:27] offset:%d" % (80 + st * 4, 83 + st * 4, st * 1024))
    SC = lambda kt, qt: 96 + (kt * 2 + qt) * 4
    for i in range(24): a("v_mov_b32 v%d, 0" % (96 + i))
    a("s_waitcnt vmcnt(0)")
    for st in range(4):
        for qt in range(2):
            B = "v[%d:%d]" % (16 + qt * 16 + st * 4, 19 + qt * 16 + st * 4)
            for kt in range(3):
                if kt == 2 and qt == 0: continue
                ab = 80 + st * 4 if kt == 0 else 48 + (kt - 1) * 16 + st * 4
                d = SC(kt, qt)
                a("v_mfma_f32_16x16x32_bf16 v[%d:%d], v[%d:%d], %s, v[%d:%d]" % (d, d + 3, ab, ab + 3, B, d, d + 3))
    a("s_nop 7")
    for et in range(8):
        a("global_load_dwordx4 v[%d:%d], v%d, s[24:25] offset:%d" % (48 + et * 4, 51 + et * 4, 3 + et // 4, (et % 4) * 1024))
    a("v_lshlrev_b32 v5, 3, v2")
    for w in range(4):
        a("global_load_dwordx2 v[%d:%d], v5, s[28:29] offset:%d" % (80 + w * 2, 81 + w * 2, w * 512))
    a("s_nop 7")
    a("v_lshrrev_b32 v6, 4, v2"); a("v_lshlrev_b32 v6, 2, v6")
    a("v_and_b32 v7, 15, v2")
    a("v_mov_b32 v8, 0xff800000")
    for r in range(4):
        a("v_add_u32 v9, %d, v6" % r)
        a("v_cmp_gt_u32 vcc, v9, v7")
        a("s_nop 1")
        a("v_cndmask_b32 v%d, v%d, v8, vcc" % (SC(1, 0) + r, SC(1, 0) + r))
        a("v_cndmask_b32 v%d, v%d, v8, vcc" % (SC(2, 1) + r, SC(2, 1) + r))
    a("s_mov_b32 s16, 0x%x" % C_SCALE)
    for qt in range(2):
        tiles = [0, 1] if qt == 0 else [0, 1, 2]
        regs = [SC(kt, qt) + r for kt in tiles for r in range(4)]
        a("v_max_f32 v10, v%d, v%d" % (regs[0], regs[1]))
        for r in regs[2:]: a("v_max_f32 v10, v10, v%d" % r)
        xmax_groups(a, 10, 11)
        a("v_mul_f32 v10, s16, v10")
        for r in regs: a("v_fma_f32 v%d, v%d, s16, -v10" % (r, r))
        for r in regs: a("v_exp_f32 v%d, v%d" % (r, r))
        a("s_nop 0")
        pb = 16 + qt * 8
        s1 = SC(1, qt)
        a("v_cvt_pk_bf16_f32 v%d, v%d, v%d" % (pb, s1, s1 + 1)); a("v_cvt_pk_bf16_f32 v%d, v%d, v%d" % (pb + 1, s1 + 2, s1 + 3))
        if qt == 1:
            s2 = SC(2, qt)
            a("v_cvt_pk_bf16_f32 v%d, v%d, v%d" % (pb + 2, s2, s2 + 1)); a("v_cvt_pk_bf16_f32 v%d, v%d, v%d" % (pb + 3, s2 + 2, s2 + 3))
        else:
            a("v_mov_b32 v%d, 0" % (pb + 2)); a("v_mov_b32 v%d, 0" % (pb + 3))
        s0 = SC(0, qt)
        a("v_cvt_pk_bf16_f32 v12, v%d, v%d" % (s0, s0 + 1)); a("v_cvt_pk_bf16_f32 v13, v%d, v%d" % (s0 + 2, s0 + 3))
        a("v_mov_b32 v%d, 0" % (pb + 4)); a("v_mov_b32 v%d, 0" % (pb + 5)); a("v_mov_b32 v%d, 0" % (pb + 6)); a("v_mov_b32 v%d, 0" % (pb + 7))
        a("s_mov_b32 exec_lo, -1"); a("s_mov_b32 exec_hi, 0")
        a("v_mov_b32 v%d, v12" % (pb + 4)); a("v_mov_b32 v%d, v13" % (pb + 5))
        a("s_mov_b32 exec_lo, 0"); a("s_mov_b32 exec_hi, -1")
        a("v_mov_b32 v%d, v12" % (pb + 6)); a("v_mov_b32 v%d, v13" % (pb + 7))
        a("s_mov_b64 exec, -1")
    for i in range(4): a("v_mov_b32 v%d, 0x3f803f80" % (40 + i))
    for i in range(64): a("v_mov_b32 v%d, 0" % (128 + i))
    for i in range(8): a("v_mov_b32 v%d, 0" % (120 + i))
    a("s_waitcnt vmcnt(0)")
    a("s_nop 4")
    for qt in range(2):
        pb = 16 + qt * 8
        d = 120 + qt * 4
        a("v_mfma_f32_16x16x32_bf16 v[%d:%d], v[40:43], v[%d:%d], v[%d:%d]" % (d, d + 3, pb, pb + 3, d, d + 3))
        for et in range(8):
            d = 128 + (qt * 8 + et) * 4
            a("v_mfma_f32_16x16x32_bf16 v[%d:%d], v[%d:%d], v[%d:%d], v[%d:%d]" % (d, d + 3, 48 + et * 4, 51 + et * 4, pb, pb + 3, d, d + 3))
    a("s_nop 7")
    for qt in range(2):
        pb = 16 + qt * 8
        d = 120 + qt * 4
        a("v_mfma_f32_16x16x16_bf16 v[%d:%d], v[40:41], v[%d:%d], v[%d:%d]" % (d, d + 3, pb + 4, pb + 5, d, d + 3))
        for et in range(8):
            d = 128 + (qt * 8 + et) * 4
            pm = pb + 4 + 2 * (et % 2)
            vm = 80 + (et // 2) * 2
            a("v_mfma_f32_16x16x16_bf16 v[%d:%d], v[%d:%d], v[%d:%d], v[%d:%d]" % (d, d + 3, vm, vm + 1, pm, pm + 1, d, d + 3))
    a("s_nop 15")
    add64(a, 30, 4, "0x%x" % WS['O'])
    a("s_lshl_b32 s15, s12, 18")
    a("s_lshl_b32 s17, s13, 8")
    a("s_add_u32 s15, s15, s17")
    add64(a, 30, 30, "s15")
    a("v_lshlrev_b32 v9, 13, v7")
    a("v_lshlrev_b32 v6, 1, v6")
    a("v_add_u32 v9, v9, v6")
    for qt in range(2):
        a("v_rcp_f32 v10, v%d" % (120 + qt * 4))
        a("s_nop 0")
        if qt == 1: a("v_add_u32 v9, %d, v9" % (16 * 8192))
        for et in range(8):
            d = 128 + (qt * 8 + et) * 4
            for r in range(4): a("v_mul_f32 v%d, v%d, v10" % (d + r, d + r))
            a("v_cvt_pk_bf16_f32 v12, v%d, v%d" % (d, d + 1)); a("v_cvt_pk_bf16_f32 v13, v%d, v%d" % (d + 2, d + 3))
            a("global_store_dwordx2 v9, v[12:13], s[30:31] offset:%d" % (et * 32))
            a("s_nop 1")

def gen_attn(a, name):
    kernel_header(a, name)
    end = a.uid("Lend")
    common_prologue(a, 512, end)
    a("s_waitcnt lgkmcnt(0)")
    a("s_lshl_b32 s11, s2, 2"); a("s_add_u32 s11, s11, s10")
    a("s_lshr_b32 s12, s11, 5"); a("s_and_b32 s13, s11, 31")
    attn_body(a)
    a.label(end); a("s_endpgm")
    return kernel_desc(name, 192, 102, 192)
```

```python
from asmlib import *
from k_gemm import add64, load_ptr
from k_attn import C_SCALE

MEMA, KSEG, QST, KST, OST, UNITS = 0, 10240, 18432, 20480, 18432, 24576
DUMMY = 22528
NLDS = 17
W = 80
T0r, T1r, L16, GATH, IDX, PARTA, REDA, PUBA, QSTW, TRA, OSTW, TMP = 0, 1, 2, 3, 4, 5, 6, 7, 8, 9, 10, 11
R0, R1, R2, R3, E_, R4, R5, R6 = 12, 20, 28, 36, 44, 56, 64, 72

PSTR = 4096
class Cnt:
    def __init__(self, a, name, maxv):
        self.a, self.name, self.maxv = a, name, maxv
        self.ops = []
    def issue(self, tag=None):
        self.ops.append(tag)
    def wait(self, tag):
        if tag not in self.ops: return
        idx = max(i for i, t in enumerate(self.ops) if t == tag)
        n = len(self.ops) - 1 - idx
        self.a("s_waitcnt %s(%d)" % (self.name, min(n, self.maxv)))
        self.ops = self.ops[idx + 1:]
    def waitall(self):
        self.a("s_waitcnt %s(0)" % self.name)
        self.ops = []
    def has(self, tag): return tag in self.ops
    def reset(self): self.ops = []

class Units:
    def __init__(self):
        self.home = {}
        regs = [W + 8 * i for i in range((256 - W) // 8)] + [256 + 8 * i for i in range(32)]
        self.b1 = [('q', 0, 0), ('q', 1, 0), ('k', 0, 0), ('k', 1, 0)]
        self.b2a = [('v', 0, 5), ('v', 1, 5)]
        self.b2b = [('v', 0, 9), ('v', 1, 9)]
        self.b2c = []
        self.bw = [('o', 9, 1)]
        l2 = self.b1 + self.b2a + self.b2b + self.bw
        lds = [('v', 0, 1), ('k', 0, 2), ('q', 1, 3), ('v', 1, 3), ('k', 1, 4), ('q', 0, 5), ('v', 0, 6), ('k', 0, 7), ('q', 1, 7), ('v', 1, 8), ('k', 1, 9)]
        lds += [('o', 1, 0), ('o', 2, 1), ('o', 4, 0), ('o', 5, 1), ('o', 7, 0), ('o', 8, 1)]
        assert len(lds) == NLDS
        for i, u in enumerate(l2): self.home[u] = ('l2', i)
        for i, u in enumerate(lds): self.home[u] = ('lds', i)
        allu = [(m, t, c) for m in 'qkv' for c in range(10) for t in range(2)] + [('o', i, c) for i in range(10) for c in range(2)]
        k = 0
        for u in allu:
            if u not in self.home:
                self.home[u] = ('reg', regs[k]); k += 1
        assert k == len(regs), (k, len(regs))
        self.nl2 = len(l2)

def xmax_groups(a, x, t):
    a("v_mov_b32 %s, %s" % (V(t), V(x)))
    a("s_nop 1")
    a("v_permlane16_swap_b32 %s, %s" % (V(x), V(t)))
    a("v_max_f32 %s, %s, %s" % (V(x), V(x), V(t)))
    a("v_mov_b32 %s, %s" % (V(t), V(x)))
    a("s_nop 1")
    a("v_permlane32_swap_b32 %s, %s" % (V(x), V(t)))
    a("v_max_f32 %s, %s, %s" % (V(x), V(x), V(t)))

FORCE_XCD = None
def role_election(a, end):
    lw = a.uid("Lrw")
    a("s_cmp_lg_u32 s10, 0"); a("s_cbranch_scc1 " + lw)
    a("s_lshl_b32 s12, s3, 2")
    a("v_mov_b32 v4, s12"); a("v_mov_b32 v5, 1")
    a("s_mov_b64 exec, 1")
    a("global_atomic_add v6, v4, v5, s[6:7] sc0")
    a("s_waitcnt vmcnt(0)")
    a("v_readfirstlane_b32 s11, v6")
    a("s_nop 3")
    lpoll = a.uid("Lwp"); ldec = a.uid("Lwd")
    a("s_mov_b32 s13, -1")
    a("s_cmp_ge_u32 s11, 32"); a("s_cbranch_scc1 " + ldec)
    PREF = 0 if FORCE_XCD is None else FORCE_XCD
    def claim():
        a("s_add_u32 s12, s3, 1")
        a("v_mov_b32 v4, 32"); a("v_mov_b32 v6, s12"); a("v_mov_b32 v7, 0")
        a("global_atomic_cmpswap v4, v[6:7], s[6:7]")
        a("s_waitcnt vmcnt(0)")
    a("s_cmp_lg_u32 s11, 31"); a("s_cbranch_scc1 " + lpoll)
    a("s_cmp_lg_u32 s3, %d" % PREF); a("s_cbranch_scc1 " + lpoll)
    claim()
    a.label(lpoll)
    a("s_mov_b32 s14, 4000000")
    lp2 = a.uid("Lwp2"); lnc = a.uid("Lwnc")
    a.label(lp2)
    a("s_cmp_lg_u32 s14, %d" % (4000000 - 2000)); a("s_cbranch_scc1 " + lnc)
    a("s_cmp_lg_u32 s11, 31"); a("s_cbranch_scc1 " + lnc)
    claim()
    a.label(lnc)
    a("v_mov_b32 v4, 32")
    a("global_load_dword v6, v4, s[6:7] sc1")
    a("s_waitcnt vmcnt(0)")
    a("v_readfirstlane_b32 s12, v6")
    a("s_sub_u32 s14, s14, 1"); a("s_cbranch_scc1 " + ldec)
    a("s_cmp_eq_u32 s12, 0"); a("s_cbranch_scc1 " + lp2)
    a("s_add_u32 s15, s3, 1")
    a("s_cmp_eq_u32 s12, s15"); a("s_cselect_b32 s13, s11, -1")
    a.label(ldec)
    a("v_mov_b32 v4, 0"); a("v_mov_b32 v6, s13")
    a("ds_write_b32 v4, v6")
    a("s_mov_b64 exec, -1")
    a("s_waitcnt lgkmcnt(0)")
    a.label(lw)
    a("s_barrier")
    a("v_mov_b32 v4, 0")
    a("ds_read_b32 v6, v4")
    a("s_waitcnt lgkmcnt(0)")
    a("v_readfirstlane_b32 s11, v6")
    a("s_nop 3")
    a("s_barrier")

def gen_chain(a, name, nsteps=64, dbg=0, stamp=0, fine=0):
    kernel_header(a, name)
    end = a.uid("Lend")
    a("s_cmp_ge_u32 s2, 256"); a("s_cbranch_scc1 " + end)
    load_ptr(a, 4, 'ws'); load_ptr(a, 6, 'dbg')
    a("s_getreg_b32 s3, hwreg(HW_REG_XCC_ID)")
    a("s_and_b32 s3, s3, 15")
    a("v_lshrrev_b32 v3, 6, v0")
    a("s_nop 0")
    a("v_readfirstlane_b32 s10, v3")
    a("s_waitcnt lgkmcnt(0)")
    role_election(a, end)
    a("s_cmp_ge_u32 s11, 32"); a("s_cbranch_scc1 " + end)
    chain_body(a, end, nsteps, dbg, stamp, fine=fine)
    a.label(end)
    a("s_endpgm")
    return kernel_desc(name, 512, 102, 256)

def chain_body(a, end, nsteps=64, dbg=0, stamp=0, merged=False, prof=0, fine=0, exp=0):
    KSC = '' if exp & 1 else None
    SC = ' sc1' if merged else ''
    fin = a.uid('Lfin')
    def ptime(idx_expr, only_first=True):
        if not prof: return
        sk = a.uid("Lpt")
        a("s_or_b32 s37, s11, s10"); a("s_cmp_lg_u32 s37, 0"); a("s_cbranch_scc1 " + sk)
        a("s_memrealtime s[38:39]")
        if isinstance(idx_expr, int): a("s_mov_b32 s37, %d" % (WS['MEMOUT'] + idx_expr * 8))
        else: a("s_lshl_b32 s37, %s, 3" % idx_expr); a("s_add_u32 s37, s37, %d" % (WS['MEMOUT'] + 64))
        a("s_waitcnt lgkmcnt(0)")
        a("s_mov_b64 exec, 1")
        a("v_mov_b32 v0, s37"); a("v_mov_b32 v252, s38") if False else None
        a("v_mov_b32 v1, s38")
        a("global_store_dword v0, v1, s[4:5]")
        if idx_expr in (2, 3):
            a("s_memtime s[38:39]"); a("s_waitcnt lgkmcnt(0)")
            a("v_mov_b32 v1, s38")
            a("global_store_dword v0, v1, s[4:5] offset:16")
        a("s_mov_b64 exec, -1")
        a.label(sk)

    U = Units()
    load_ptr(a, 8, 'mem0')
    load_ptr(a, 40, 'Wq'); load_ptr(a, 42, 'Wk'); load_ptr(a, 44, 'Wv'); load_ptr(a, 46, 'Wo')
    if stamp: load_ptr(a, 94, 'out')
    a("v_and_b32 v1, 63, v0")
    a("v_lshlrev_b32 v2, 4, v1")
    if prof:
        a("v_mov_b32 v200, v1")
        ptime(0)
        a("v_mov_b32 v1, v200")
    a("v_and_b32 v14, 15, v1")
    a("v_lshrrev_b32 v15, 4, v1")
    a("v_lshrrev_b32 v16, 3, v14")
    a("v_and_b32 v17, 7, v14")
    a("v_lshlrev_b32 v18, 1, v15"); a("v_add_u32 v18, v18, v16")
    a("v_lshlrev_b32 v3, 7, v18"); a("v_lshlrev_b32 v19, 4, v17"); a("v_add_u32 v3, v3, v19")
    a("v_mov_b32 v4, 0x4444"); a("v_mov_b32 v19, 0xeeee"); a("v_cmp_eq_u32 vcc, 1, v16"); a("s_nop 1"); a("v_cndmask_b32 v4, v4, v19, vcc")
    a("v_and_b32 v20, 1, v15")
    a("v_lshrrev_b32 v21, 5, v1")
    a("v_lshlrev_b32 v19, 3, v21"); a("v_add_u32 v19, v19, v16")
    a("s_lshl_b32 s12, s10, 1"); a("v_add_u32 v19, s12, v19")
    a("v_mul_u32_u24 v5, %d, v19" % PSTR); a("s_lshl_b32 s12, s11, 7"); a("v_add_u32 v5, s12, v5")
    a("v_lshlrev_b32 v19, 4, v17"); a("v_add_u32 v5, v5, v19")
    a("v_lshlrev_b32 v19, 3, v20"); a("v_add_u32 v5, v5, v19")
    a("s_lshl_b32 s16, s10, 5"); a("s_add_u32 s16, s16, s11")
    a("v_lshlrev_b32 v19, 2, v16"); a("v_add_u32 v19, v19, v15"); a("v_lshlrev_b32 v6, 7, v19")
    a("v_lshlrev_b32 v19, 4, v17"); a("v_add_u32 v6, v6, v19")
    a("s_mul_i32 s12, s16, %d" % PSTR); a("v_add_u32 v6, s12, v6")
    a("v_lshlrev_b32 v19, 1, v20"); a("v_add_u32 v19, v19, v21"); a("v_lshlrev_b32 v19, 2, v19")
    a("v_lshlrev_b32 v7, 4, v14"); a("v_add_u32 v7, v7, v19")
    a("s_lshl_b32 s12, s16, 7"); a("v_add_u32 v7, s12, v7")
    a("v_lshlrev_b32 v19, 4, v21"); a("v_add_u32 v19, v19, v14"); a("s_lshl_b32 s12, s10, 5"); a("v_add_u32 v19, s12, v19")
    a("v_lshlrev_b32 v8, 4, v19"); a("v_lshlrev_b32 v19, 3, v20"); a("v_add_u32 v8, v8, v19")
    a("v_lshrrev_b32 v19, 2, v14"); a("v_lshlrev_b32 v22, 3, v15"); a("v_add_u32 v19, v19, v22"); a("v_lshlrev_b32 v9, 4, v19")
    a("v_and_b32 v19, 1, v1"); a("v_lshlrev_b32 v19, 3, v19"); a("v_add_u32 v9, v9, v19")
    a("v_lshlrev_b32 v10, 7, v20"); a("v_lshlrev_b32 v19, 4, v14"); a("v_add_u32 v10, v10, v19")
    a("v_lshrrev_b32 v19, 1, v15"); a("v_lshlrev_b32 v19, 2, v19"); a("v_add_u32 v10, v10, v19")
    a("s_lshl_b32 s12, s10, 9"); a("s_add_u32 s12, s12, %d" % OST); a("v_add_u32 v10, s12, v10")
    a("v_mul_u32_u24 v79, 1280, v17"); a("v_lshlrev_b32 v19, 4, v18"); a("v_add_u32 v79, v79, v19")
    add64(a, 52, 4, "0x%x" % WS['PART'])
    add64(a, 54, 4, "0x%x" % WS['MEM'])
    for i in range(4): a("v_mov_b32 v%d, -1" % (48 + i))
    lni = a.uid("Lni")
    a("s_cmp_ge_u32 s16, 80"); a("s_cbranch_scc1 " + lni)
    a("s_mul_i32 s12, s16, %d" % PSTR); a("v_add_u32 v19, s12, v2")
    for j in range(4): a("global_store_dwordx4 v19, v[48:51], s[52:53] offset:%d" % (j * 1024))
    a("s_lshl_b32 s12, s16, 7"); a("v_add_u32 v19, s12, v2")
    a("s_mov_b64 exec, 0xff")
    a("global_store_dwordx4 v19, v[48:51], s[54:55]")
    a("v_add_u32 v19, 10240, v19")
    a("global_store_dwordx4 v19, v[48:51], s[54:55]")
    a("s_mov_b64 exec, -1")
    a.label(lni)
    a("s_waitcnt vmcnt(0)")
    a("s_barrier")
    lar = a.uid("Lar")
    a("s_cmp_lg_u32 s10, 0"); a("s_cbranch_scc1 " + lar)
    a("s_mov_b64 exec, 1")
    a("v_mov_b32 v48, 36"); a("v_mov_b32 v49, 1")
    a("global_atomic_add v48, v49, s[6:7]")
    a("s_mov_b64 exec, -1")
    a.label(lar)
    a("s_lshl_b32 s12, s10, 4"); a("v_add_u32 v19, s12, v15")
    a("v_lshlrev_b32 v22, 4, v14")
    a("v_lshlrev_b32 v24, 13, v19"); a("v_add_u32 v24, v24, v22")
    for j in range(1, 4): a("v_add_u32 v%d, %d, v24" % (24 + j, j * 4 * 8192))
    a("v_mul_u32_u24 v28, 1280, v19"); a("v_add_u32 v28, v28, v22")
    for j in range(1, 4): a("v_add_u32 v%d, %d, v28" % (28 + j, j * 4 * 1280))
    a("v_lshlrev_b32 v23, 1, v20"); a("v_xor_b32 v23, v23, v14"); a("v_lshlrev_b32 v23, 4, v23")
    a("v_lshlrev_b32 v32, 8, v19"); a("v_add_u32 v32, v32, v23")
    for j in range(1, 4):
        a("v_xor_b32 v%d, %d, v32" % (32 + j, j * 64)); a("v_add_u32 v%d, %d, v%d" % (32 + j, j * 1024, 32 + j))
    a("v_lshrrev_b32 v19, 2, v14")
    a("v_and_b32 v21, 3, v14")
    a("v_lshrrev_b32 v22, 1, v15"); a("v_lshlrev_b32 v22, 4, v22")
    a("v_lshlrev_b32 v23, 2, v20"); a("v_add_u32 v22, v22, v23")
    a("v_and_b32 v23, 1, v19"); a("v_add_u32 v22, v22, v23")
    a("v_lshrrev_b32 v36, 1, v19"); a("v_lshlrev_b32 v37, 3, v36"); a("v_add_u32 v22, v22, v37")
    a("v_lshlrev_b32 v22, 8, v22")
    a("v_lshlrev_b32 v36, 1, v36"); a("v_add_u32 v36, v36, v20"); a("v_lshlrev_b32 v36, 2, v36")
    a("v_lshlrev_b32 v23, 1, v23"); a("v_add_u32 v36, v36, v23")
    a("v_lshrrev_b32 v37, 1, v21")
    a("v_and_b32 v38, 1, v21"); a("v_lshlrev_b32 v38, 3, v38"); a("v_add_u32 v22, v22, v38")
    for (dst, expr) in ((40, ('2w', 0)), (41, ('2w', 1)), (42, ('w', 0)), (43, ('w', 4))):
        if expr[0] == '2w':
            a("s_lshl_b32 s12, s10, 2"); a("s_add_u32 s12, s12, %d" % (2 * expr[1]))
        else:
            a("s_lshl_b32 s12, s10, 1"); a("s_add_u32 s12, s12, %d" % (2 * expr[1]))
        a("v_add_u32 v38, s12, v37"); a("v_xor_b32 v38, v38, v36"); a("v_lshlrev_b32 v38, 4, v38")
        a("v_add_u32 v%d, v22, v38" % dst)
    a("s_lshl_b32 s12, s11, 2"); a("s_add_u32 s12, s12, s10"); a("s_mul_i32 s12, s12, %d" % (U.nl2 * 2048))
    add64(a, 48, 4, "0x%x" % WS['WL2']); add64(a, 48, 48, "s12")
    a("s_mul_i32 s17, s10, %d" % (NLDS * 2048)); a("s_add_u32 s17, s17, %d" % UNITS)
    a("v_add_u32 v11, s17, v2")
    a("s_waitcnt lgkmcnt(0)")
    pieces = [(m, c, None) for m in 'qkv' for c in range(10)] + [('o', c, cg) for cg in range(5) for c in range(2)]
    def piece_base(p, dst):
        m, c, cg = p
        if m == 'o':
            a("s_mul_i32 s12, s11, 163840"); a("s_add_u32 s12, s12, %d" % (64 * c * 1280 + cg * 256)); add64(a, dst, 46, "s12")
        else:
            src = {'q': 40, 'k': 42, 'v': 44}[m]
            a("s_lshl_b32 s12, s11, 8"); a("s_add_u32 s12, s12, %d" % (64 * c * 8192)); add64(a, dst, src, "s12")
    NB = 2
    BUF = [44, 60]
    TMPU = [80, 88]
    def issue_loads(p, buf):
        piece_base(p, 50)
        vb = 28 if p[0] == 'o' else 24
        for j in range(4):
            a("global_load_dwordx4 v[%d:%d], v%d, s[50:51]" % (buf + 4 * j, buf + 4 * j + 3, vb + j))
    def keyof(p, t):
        m, c, cg = p
        return (m, t, c) if m != 'o' else ('o', cg * 2 + t, c)
    late = [p for p in pieces if any(U.home[keyof(p, t)][0] == 'reg' and U.home[keyof(p, t)][1] in (80, 88) for t in range(2))]
    for p in late:
        for t in range(2): assert U.home[keyof(p, t)][0] == 'reg' or True
    pieces = [p for p in pieces if p not in late] + late
    issue_loads(pieces[0], BUF[0])
    for pi, p in enumerate(pieces):
        buf = BUF[pi % 2]
        if pi + 1 < len(pieces):
            issue_loads(pieces[pi + 1], BUF[(pi + 1) % 2])
            a("s_waitcnt vmcnt(4)")
        else:
            a("s_waitcnt vmcnt(0)")
        for j in range(4):
            a("ds_write_b128 v%d, v[%d:%d]" % (32 + j, buf + 4 * j, buf + 4 * j + 3))
        a("s_waitcnt lgkmcnt(0)")
        a("s_barrier")
        m, c, cg = p
        for t in range(2):
            home = U.home[keyof(p, t)]
            ar = (42 if m == 'o' else 40) + t
            dst = home[1] if home[0] == 'reg' else buf + 8 * t
            for i in range(4):
                a("ds_read_b64_tr_b16 %s, v%d offset:%d" % (R(dst + 2 * i, 2), ar, [0, 2, 32, 34][i] * 256))
        a("s_waitcnt lgkmcnt(0)")
        need_vm = False
        for t in range(2):
            home = U.home[keyof(p, t)]
            src = buf + 8 * t
            if home[0] == 'lds':
                a("ds_write_b128 v11, v[%d:%d] offset:%d" % (src, src + 3, home[1] * 2048))
                a("ds_write_b128 v11, v[%d:%d] offset:%d" % (src + 4, src + 7, home[1] * 2048 + 1024))
            elif home[0] == 'l2':
                a("v_add_u32 v38, %d, v2" % (home[1] * 2048))
                a("global_store_dwordx4 v38, v[%d:%d], s[48:49]" % (src, src + 3))
                a("global_store_dwordx4 v38, v[%d:%d], s[48:49] offset:1024" % (src + 4, src + 7))
                need_vm = True
        if need_vm: a("s_waitcnt vmcnt(0)")
        a("s_waitcnt lgkmcnt(0)")
        a("s_barrier")
    ptime(1)
    if merged:
        lwl = a.uid("Lwl")
        a("s_cmp_lg_u32 s10, 0"); a("s_cbranch_scc1 " + lwl)
        a("s_mov_b64 exec, 1")
        a("v_mov_b32 v48, %d" % DB_WL); a("v_mov_b32 v49, 1")
        a("global_atomic_add v48, v49, s[6:7]")
        a("s_mov_b64 exec, -1")
        a.label(lwl)
    a("v_mov_b32 v11, v79")
    vm = Cnt(a, "vmcnt", 63); lg = Cnt(a, "lgkmcnt", 15)
    L2B = [22, 24, 26, 28, 30]
    if not stamp:
        for g_ in range(5): add64(a, L2B[g_], 48, "%d" % (g_ * 4096))
    def l2half(key, dst, half):
        h = U.home[key]; assert h[0] == 'l2'
        off = h[1] * 2048 + half * 1024
        if stamp:
            a("v_add_u32 v1, %d, v2" % off)
            a("global_load_dwordx4 v[%d:%d], v1, s[48:49]" % (dst + 4 * half, dst + 4 * half + 3)); vm.issue(key)
        else:
            b_ = L2B[off // 4096]
            a("global_load_dwordx4 v[%d:%d], v2, s[%d:%d] offset:%d" % (dst + 4 * half, dst + 4 * half + 3, b_, b_ + 1, off % 4096)); vm.issue(key)
    B1DST = [R1, R3, R5, R6]; B2DST = [R1, R3]
    loc = {}
    for key, dst in zip(U.b1, B1DST):
        l2half(key, dst, 0); l2half(key, dst, 1); loc[key] = dst
    a("s_lshl_b32 s12, s11, 13"); a("s_lshl_b32 s13, s10, 11"); a("s_add_u32 s12, s12, s13")
    add64(a, 58, 4, "0x%x" % WS['K']); add64(a, 58, 58, "s12")
    add64(a, 60, 4, "0x%x" % WS['V']); add64(a, 60, 60, "s12")
    a("s_lshl_b32 s12, s11, 13"); a("s_and_b32 s13, s10, 1"); a("s_lshl_b32 s13, s13, 12"); a("s_add_u32 s12, s12, s13"); a("s_add_u32 s12, s12, %d" % (64 * 8192))
    a("s_cmp_lt_u32 s10, 2"); a("s_mov_b32 s13, 0x%x" % WS['V']); a("s_cselect_b32 s13, 0x%x, s13" % WS['K']); a("s_add_u32 s12, s12, s13")
    add64(a, 56, 4, "s12")
    a("s_lshl_b32 s12, s11, 12"); a("s_lshl_b32 s13, s10, 10"); a("s_add_u32 s12, s12, s13")
    add64(a, 62, 4, "0x%x" % WS['KM']); add64(a, 62, 62, "s12")
    a("s_lshl_b32 s12, s11, 11"); a("s_lshl_b32 s13, s10, 9"); a("s_add_u32 s12, s12, s13")
    add64(a, 64, 4, "0x%x" % WS['VM']); add64(a, 64, 64, "s12")
    for p in range(2):
        for j in range(3):
            a("s_lshl_b32 s12, s10, 10"); a("s_add_u32 s12, s12, %d" % (p * 10240 + j * 4096)); add64(a, 66 + 6 * p + 2 * j, 54, "s12")
        add64(a, 78 + 2 * p, 54, "%d" % (p * 10240))
    for cg in range(5): add64(a, 82 + 2 * cg, 52, "%d" % (cg * 16 * PSTR))
    a("s_lshl_b32 s21, s10, 11"); a("s_add_u32 s21, s21, %d" % KSEG)
    a("s_waitcnt vmcnt(0) lgkmcnt(0)")
    vm.reset()
    a("s_barrier")
    lcb = a.uid("Lcb"); lcd = a.uid("Lcd")
    a("s_cmp_lg_u32 s10, 0"); a("s_cbranch_scc1 " + lcd)
    a("s_mov_b64 exec, 1")
    a("v_mov_b32 v0, 36")
    a("s_mov_b32 s14, 4000000")
    a.label(lcb)
    a("global_load_dword v1, v0, s[6:7] sc1")
    a("s_waitcnt vmcnt(0)")
    a("v_readfirstlane_b32 s12, v1")
    a("s_sub_u32 s14, s14, 1"); a("s_cbranch_scc1 " + lcd)
    a("s_cmp_lt_u32 s12, 32"); a("s_cbranch_scc1 " + lcb)
    a.label(lcd)
    a("s_mov_b64 exec, -1")
    a("s_barrier")
    a("s_mov_b32 s18, 0")
    a("s_mov_b32 s19, 8000000")
    a("s_mov_b32 s20, 0x%x" % C_SCALE)
    if stamp:
        a("s_lshl_b32 s12, s11, 2"); a("s_add_u32 s12, s12, s10"); a("s_lshl_b32 s12, s12, 6")
        if merged:
            a("s_add_u32 s12, s12, 0x%x" % (WS['MEMOUT'] + 0x100000)); add64(a, 94, 4, "s12")
        else:
            a("s_add_u32 s94, s94, s12"); a("s_addc_u32 s95, s95, 0")
    def st(i):
        if stamp and i < 13 and (not fine or (fine == 1 and i == 0)):
            a("s_memtime s[%d:%d]" % (22 + 2 * i, 23 + 2 * i))
    def fst(i):
        if stamp and fine: a("s_memtime s[%d:%d]" % (22 + 2 * i, 23 + 2 * i))
    G0, G1, G2 = E_, E_ + 4, E_ + 8
    def kv_ready(sblk):
        ok = a.uid("Lkr"); lp = a.uid("Lkp")
        a("s_cmp_lt_u32 %s, s98" % sblk); a("s_cbranch_scc1 " + ok)
        a.label(lp)
        a("v_lshrrev_b32 v0, 2, v2")
        a("s_mov_b64 exec, 0xffff")
        a("global_load_dword v1, v0, s[6:7] offset:%d sc1" % DB_KVQ)
        a("s_waitcnt vmcnt(0)")
        a("v_and_b32 v1, 0xffff, v1")
        a("v_cmp_le_u32 vcc, 64, v1")
        a("s_mov_b64 exec, -1")
        a("s_nop 3")
        a("s_or_b32 s99, vcc_lo, 0xffff0000"); a("s_not_b32 s99, s99")
        a("s_ff1_i32_b32 s98, s99")
        a("s_cmp_eq_u32 s98, -1"); a("s_cselect_b32 s98, 16, s98")
        a("s_sub_u32 s19, s19, 1"); a("s_cbranch_scc1 " + end)
        a("s_cmp_lt_u32 %s, s98" % sblk); a("s_cbranch_scc0 " + lp)
        a.label(ok)
    if merged:
        a("s_mov_b32 s98, 0"); a("s_mov_b32 s100, 0")
        kv_ready("s100")
        a("s_lshr_b32 s12, s11, 2"); a("s_lshl_b32 s12, s12, 7"); a("s_and_b32 s13, s11, 3"); a("s_lshl_b32 s13, s13, 2"); a("s_add_u32 s12, s12, s13")
        a("s_add_u32 s101, s12, 0x%x" % FL('PROG'))
    ptime(2)
    a("s_mov_b32 s96, -1"); a("s_mov_b32 s97, 0")
    def kdma():
        a("s_mov_b32 m0, s21")
        a("s_nop 0")
        a("global_load_lds_dwordx4 v2, s[58:59]" + SC); vm.issue('kd')
        a("s_add_u32 m0, s21, 1024")
        a("v_add_u32 v1, 1024, v2")
        a("global_load_lds_dwordx4 v1, s[58:59]" + SC); vm.issue('kd')
        a("s_add_u32 s58, s58, 262144"); a("s_addc_u32 s59, s59, 0")
    kdma()
    for i in range(8): a("v_mov_b32 v%d, 0" % (R0 + i)); a("v_mov_b32 v%d, 0" % (R4 + i)); a("v_mov_b32 v%d, 0" % (R2 + i))
    for j, gr in enumerate((G0, G1, G2)):
        a("s_lshl_b32 s13, s10, 7"); a("s_add_u32 s13, s13, %d" % (j * 512))
        add64(a, 12, 8, "s13")
        if j == 2:
            sk = a.uid("Lsk"); a("s_cmp_ge_u32 s10, 2"); a("s_cbranch_scc1 " + sk)
        a("global_load_dwordx4 v[%d:%d], v11, s[12:13]" % (gr, gr + 3))
        if j == 2: a.label(sk)
    a("s_waitcnt vmcnt(0)")
    loopA = a.uid("LstepA"); loopB = a.uid("LstepB")
    entryA = a.uid("LentA")
    a("s_branch " + entryA)

    def smf(d, fa, b):
        a("v_smfmac_f32_16x16x64_bf16 v[%d:%d], v[%d:%d], %s, v4" % (d, d + 3, fa, fa + 3, R(b, 8)))
    def breg(key):
        h = U.home[key]
        return h[1] if h[0] == 'reg' else loc[key]
    def swapadd(base, dst):
        for r in range(4): a("v_permlane32_swap_b32 v%d, v%d" % (base + r, base + 4 + r))
        for r in range(4): a("v_add_f32 v%d, v%d, v%d" % (base + r, base + r, base + 4 + r))
        a("v_cvt_pk_bf16_f32 v%d, v%d, v%d" % (dst, base, base + 1)); a("v_cvt_pk_bf16_f32 v%d, v%d, v%d" % (dst + 1, base + 2, base + 3))
    def ldsunit(key, dst):
        h = U.home[key]; assert h[0] == 'lds'
        a("ds_read_b128 v[%d:%d], v11 offset:%d" % (dst, dst + 3, h[1] * 2048)); lg.issue(key)
        a("ds_read_b128 v[%d:%d], v11 offset:%d" % (dst + 4, dst + 7, h[1] * 2048 + 1024)); lg.issue(key)
        loc[key] = dst
    def afread(c, dst, tag='af'):
        a("ds_read_b128 v[%d:%d], v2 offset:%d" % (dst, dst + 3, MEMA + c * 1024)); lg.issue((tag, c))

    def step(par, entry, nxt):
        lp = a.uid("Lgpoll")
        gb = 66 + 6 * par
        sk0 = a.uid("Lsk"); a("s_cmp_ge_u32 s10, 2"); a("s_cbranch_scc0 " + sk0)
        for i in range(4): a("v_mov_b32 v%d, 0" % (G2 + i))
        a.label(sk0)
        gsleep = (exp >> 5) & 7
        if gsleep: a("s_sleep %d" % gsleep)
        if stamp: a("s_mov_b32 s44, 0")
        a.label(lp)
        if stamp: a("s_add_u32 s44, s44, 1")
        a("global_load_dwordx4 v[%d:%d], v3, s[%d:%d] sc1" % (G0, G0 + 3, gb, gb + 1))
        a("global_load_dwordx4 v[%d:%d], v3, s[%d:%d] sc1" % (G1, G1 + 3, gb + 2, gb + 3))
        sk = a.uid("Lsk"); a("s_cmp_ge_u32 s10, 2"); a("s_cbranch_scc1 " + sk)
        a("global_load_dwordx4 v[%d:%d], v3, s[%d:%d] sc1" % (G2, G2 + 3, gb + 4, gb + 5))
        a.label(sk)
        a("s_waitcnt vmcnt(0)")
        a("v_max3_u32 v0, v%d, v%d, v%d" % (G0, G0 + 1, G0 + 2)); a("v_max3_u32 v1, v%d, v%d, v%d" % (G0 + 3, G1, G1 + 1))
        a("v_max3_u32 v0, v0, v%d, v%d" % (G1 + 2, G1 + 3)); a("v_max3_u32 v1, v1, v%d, v%d" % (G2, G2 + 1))
        a("v_max3_u32 v0, v0, v%d, v%d" % (G2 + 2, G2 + 3)); a("v_max_u32 v0, v0, v1")
        a("v_cmp_eq_u32 vcc, -1, v0")
        a("s_sub_u32 s19, s19, 1"); a("s_cbranch_scc1 " + end)
        a("s_cbranch_vccnz " + lp)
        if entry: a.label(entry)
        vm.reset(); lg.reset()
        st(1)
        a("s_lshl_b32 s13, s10, 10"); a("v_add_u32 v1, s13, v2")
        a("ds_write_b128 v1, v[%d:%d] offset:%d" % (G0, G0 + 3, MEMA))
        a("ds_write_b128 v1, v[%d:%d] offset:%d" % (G1, G1 + 3, MEMA + 4096))
        sk = a.uid("Lsk"); a("s_cmp_ge_u32 s10, 2"); a("s_cbranch_scc1 " + sk)
        a("ds_write_b128 v1, v[%d:%d] offset:%d" % (G2, G2 + 3, MEMA + 8192))
        a.label(sk)
        a("v_add_u32 v11, s17, v2")
        a("s_waitcnt lgkmcnt(0)")
        a("s_barrier")
        st(2)
        AF = [E_, E_ + 4, E_ + 8]
        afread(0, AF[0]); afread(1, AF[1])
        ACQ, ACK, ACV = R0, R4, R2
        TS = [R5, R6]
        allorder = [('q', 0), ('q', 1), ('k', 0), ('k', 1), ('v', 0), ('v', 1)]
        seq = []
        for c in range(10):
            o = list(allorder)
            if c == 0: o = [('k', 0), ('k', 1), ('q', 0), ('q', 1), ('v', 0), ('v', 1)]
            seq.append(o)
        use_order = [(m, t, c) for c in range(10) for (m, t) in seq[c]]
        qpend = [k for k in use_order if U.home[k][0] == 'lds']; qn = [0]
        def qpref():
            if qpend:
                k = qpend.pop(0); ldsunit(k, TS[qn[0] % 2]); qn[0] += 1
        sideA = [(k_, d_, hf) for k_, d_ in zip(U.b2a, B2DST) for hf in range(2)]
        sideB = [(k_, d_, hf) for k_, d_ in zip(U.b2b, B2DST) for hf in range(2)]
        sideC = [(k_, d_, hf) for k_, d_ in zip(U.b2c, B2DST[1:]) for hf in range(2)]
        for c in range(10):
            if fine == 1: a("s_memtime s[%d:%d]" % (24 + 2 * c, 25 + 2 * c))
            if c + 2 < 10: afread(c + 2, AF[(c + 2) % 3])
            fa = AF[c % 3]
            lg.wait(('af', c))
            for i, (m, t) in enumerate(seq[c]):
                key = (m, t, c); h = U.home[key]
                if h[0] == 'lds': lg.wait(key)
                elif h[0] == 'l2' and c > 0: vm.wait(key)
                smf({'q': ACQ, 'k': ACK, 'v': ACV}[m] + 4 * t, fa, breg(key))
                if c == 0 and i in (0, 1): qpref()
                if h[0] == 'lds': qpref()
                if ((c == 0 and i in (3, 5)) or (c == 1 and i in (1, 3))) and sideA:
                    k_, d_, h_ = sideA.pop(0); l2half(k_, d_, h_); loc[k_] = d_
                if ((c == 5 and i == 5) or (c == 6 and i in (1, 3, 5))) and sideB:
                    k_, d_, h_ = sideB.pop(0); l2half(k_, d_, h_); loc[k_] = d_
                if c == 7 and i in (1, 4) and sideC:
                    k_, d_, h_ = sideC.pop(0); l2half(k_, d_, h_); loc[k_] = d_
        assert not sideA and not sideB and not sideC and not qpend
        st(3)
        def swapadd_pk(base, dst):
            for r in range(4): a("v_permlane32_swap_b32 v%d, v%d" % (base + r, base + 4 + r))
            a("v_pk_add_f32 v[%d:%d], v[%d:%d], v[%d:%d]" % (base, base + 1, base, base + 1, base + 4, base + 5))
            a("v_pk_add_f32 v[%d:%d], v[%d:%d], v[%d:%d]" % (base + 2, base + 3, base + 2, base + 3, base + 6, base + 7))
            a("v_cvt_pk_bf16_f32 v%d, v%d, v%d" % (dst, base, base + 1)); a("v_cvt_pk_bf16_f32 v%d, v%d, v%d" % (dst + 1, base + 2, base + 3))
        VS = R3
        a("global_load_dwordx4 v[%d:%d], v2, s[60:61]%s" % (VS, VS + 3, SC)); vm.issue('vseg')
        a("s_nop 4")
        swapadd_pk(ACQ, ACQ); a("ds_write_b64 v8, v[%d:%d] offset:%d" % (ACQ, ACQ + 1, QST))
        a("global_load_dwordx4 v[%d:%d], v2, s[60:61] offset:1024%s" % (VS + 4, VS + 7, SC)); vm.issue('vseg')
        swapadd_pk(ACK, ACK); a("ds_write_b64 v8, v[%d:%d] offset:%d" % (ACK, ACK + 1, KST))
        def trread(base, stp, dst, tag):
            a("ds_read_b64_tr_b16 v[%d:%d], v9 offset:%d" % (dst, dst + 1, base + stp * 512)); lg.issue((tag, stp))
            a("ds_read_b64_tr_b16 v[%d:%d], v9 offset:%d" % (dst + 2, dst + 3, base + stp * 512 + 64)); lg.issue((tag, stp))
        def ksread(stp, dst):
            a("ds_read_b128 v[%d:%d], v2 offset:%d" % (dst, dst + 3, KSEG + stp * 1024)); lg.issue(('ks', stp))
            a("ds_read_b128 v[%d:%d], v2 offset:%d" % (dst + 4, dst + 7, KSEG + 4096 + stp * 1024)); lg.issue(('ks', stp))
        QF = [R5, R5 + 4, R5, R5 + 4]; KF = [R0, R0 + 4, R4, R4 + 4]; KS = [R1, None]
        ksread(0, R1)
        if merged and par == 0:
            sk = a.uid("Lkv")
            a("s_and_b32 s99, s18, 3"); a("s_cmp_lg_u32 s99, 2"); a("s_cbranch_scc1 " + sk)
            a("s_cmp_ge_u32 s18, 62"); a("s_cbranch_scc1 " + sk)
            a("s_add_u32 s100, s18, 2"); a("s_lshr_b32 s100, s100, 2")
            kv_ready("s100")
            a.label(sk)
        a("v_lshlrev_b32 v1, 2, v2")
        a("s_mov_b32 m0, %d" % DUMMY)
        a("s_nop 0")
        if not exp & 2: a("global_load_lds_dword v1, s[56:57]" + SC); vm.issue('touch')
        a("s_waitcnt lgkmcnt(0)"); lg.reset()
        a("s_barrier")
        st(4)
        trread(QST, 0, QF[0], 'qf'); trread(KST, 0, KF[0], 'kf')
        trread(QST, 1, QF[1], 'qf'); trread(KST, 1, KF[1], 'kf')
        def ks_tile(stp, kt, dst):
            a("ds_read_b128 v[%d:%d], v2 offset:%d" % (dst, dst + 3, KSEG + kt * 4096 + stp * 1024)); lg.issue(('ks', stp, kt))
        KSR = {(st_, kt): [R1, R6][st_ % 2] + 4 * kt for st_ in range(4) for kt in range(2)}
        ks_tile(1, 0, KSR[(1, 0)]); ks_tile(1, 1, KSR[(1, 1)])
        order_ks = [(0, 0), (0, 1), (1, 0), (1, 1), (2, 0), (2, 1), (3, 0), (3, 1)]
        nxt_ks = {(st_, kt): (st_ + 2, kt) for st_ in range(2) for kt in range(2)}
        for stp in range(4):
            q = QF[stp]
            lg.wait(('qf', stp))
            def sc(d, aop):
                c_ = "0" if stp == 0 else "v[%d:%d]" % (d, d + 3)
                a("v_mfma_f32_16x16x32_bf16 v[%d:%d], v[%d:%d], v[%d:%d], %s" % (d, d + 3, aop, aop + 3, q, q + 3, c_))
            lg.wait(('kf', stp))
            sc(E_, KF[stp])
            for kt in range(2):
                lg.wait(('ks', stp, kt))
                sc(E_ + 4 + 4 * kt, KSR[(stp, kt)])
                y = nxt_ks.get((stp, kt))
                if y: assert KSR[y] == KSR[(stp, kt)]; ks_tile(y[0], y[1], KSR[y])
            if stp + 2 < 4:
                trread(QST, stp + 2, QF[stp + 2], 'qf'); trread(KST, stp + 2, KF[stp + 2], 'kf')
        swapadd_pk(ACV, ACV)
        a("v_lshrrev_b32 v1, 1, v2")
        a("global_store_dwordx2 v1, v[%d:%d], s[64:65]%s" % (ACV, ACV + 1, '' if exp & 1 else SC)); vm.issue('vm')
        lkm = a.uid("Lkm")
        for w in range(4):
            nx = a.uid("Lkmn")
            if w < 3:
                a("s_cmp_lg_u32 s10, %d" % w); a("s_cbranch_scc1 " + nx)
            a("global_store_dwordx4 v2, v[%d:%d], s[62:63]%s" % (KF[w], KF[w] + 3, '' if exp & 1 else SC))
            if w < 3:
                a("s_branch " + lkm); a.label(nx)
        a.label(lkm)
        vm.issue('km')
        a("s_cmp_eq_u32 s18, %d" % (nsteps - 1)); a("s_cbranch_scc1 " + fin)
        a("s_barrier")
        st(5)
        kdma()
        regs = list(range(E_, E_ + 12))
        PP = R0
        VS = R3
        a("v_max3_f32 v0, v%d, v%d, v%d" % (regs[0], regs[1], regs[2]))
        a("v_max3_f32 v1, v%d, v%d, v%d" % (regs[3], regs[4], regs[5]))
        a("v_max3_f32 v0, v0, v%d, v%d" % (regs[6], regs[7]))
        a("v_max3_f32 v1, v1, v%d, v%d" % (regs[8], regs[9]))
        a("v_max3_f32 v0, v0, v%d, v%d" % (regs[10], regs[11]))
        a("v_max_f32 v0, v0, v1")
        xmax_groups(a, 0, 1)
        a("v_mul_f32 v0, s20, v0")
        for r in regs[4:] + regs[:4]: a("v_fma_f32 v%d, v%d, s20, -v0" % (r, r))
        for r in regs[4:]: a("v_exp_f32 v%d, v%d" % (r, r))
        a("v_cvt_pk_bf16_f32 v%d, v%d, v%d" % (PP, E_ + 4, E_ + 5)); a("v_cvt_pk_bf16_f32 v%d, v%d, v%d" % (PP + 1, E_ + 6, E_ + 7))
        a("v_cvt_pk_bf16_f32 v%d, v%d, v%d" % (PP + 2, E_ + 8, E_ + 9)); a("v_cvt_pk_bf16_f32 v%d, v%d, v%d" % (PP + 3, E_ + 10, E_ + 11))
        ONE = R4
        for i in range(4): a("v_mov_b32 v%d, 0x3f803f80" % (ONE + i))
        for r in regs[:4]: a("v_exp_f32 v%d, v%d" % (r, r))
        vm.wait('vseg')
        if merged:
            sk = a.uid("Lpg")
            a("s_cmp_lg_u32 s10, 3"); a("s_cbranch_scc1 " + sk)
            a("s_mov_b64 exec, 1")
            a("v_mov_b32 v0, s101"); a("v_mov_b32 v1, s18")
            a("global_store_dword v0, v1, s[4:5] sc1")
            a("s_mov_b64 exec, -1")
            a.label(sk)
        OA = R1; SUM = R6
        a("v_mfma_f32_16x16x32_bf16 v[%d:%d], v[%d:%d], v[%d:%d], 0" % (SUM, SUM + 3, ONE, ONE + 3, PP, PP + 3))
        a("v_cvt_pk_bf16_f32 v0, v%d, v%d" % (E_, E_ + 1)); a("v_cvt_pk_bf16_f32 v1, v%d, v%d" % (E_ + 2, E_ + 3))
        a("v_mfma_f32_16x16x32_bf16 v[%d:%d], v[%d:%d], v[%d:%d], 0" % (OA, OA + 3, VS, VS + 3, PP, PP + 3))
        a("v_cndmask_b32_e64 v%d, 0, v0, s[96:97]" % (PP + 4)); a("v_cndmask_b32_e64 v%d, 0, v1, s[96:97]" % (PP + 5))
        a("v_mfma_f32_16x16x32_bf16 v[%d:%d], v[%d:%d], v[%d:%d], 0" % (OA + 4, OA + 7, VS + 4, VS + 7, PP, PP + 3))
        a("v_cndmask_b32_e64 v%d, v0, 0, s[96:97]" % (PP + 6)); a("v_cndmask_b32_e64 v%d, v1, 0, s[96:97]" % (PP + 7))
        st(6)
        okeys = [('o', cg * 2 + t, c) for cg in range(5) for t in range(2) for c in range(2)]
        pend = [k for k in okeys if U.home[k][0] == 'lds']
        wn_ = [0]
        def pref():
            if pend:
                k = pend.pop(0); ldsunit(k, R5); wn_[0] += 1
        pref()
        for b, inc in ((60, 262144), (56, 262144), (62, 32 * 4096), (64, 32 * 2048)):
            a("s_add_u32 s%d, s%d, %d" % (b, b, inc)); a("s_addc_u32 s%d, s%d, 0" % (b + 1, b + 1))
        a("s_nop 1")
        a("v_mfma_f32_16x16x16_bf16 v[%d:%d], v[%d:%d], v[%d:%d], v[%d:%d]" % (SUM, SUM + 3, ONE, ONE + 1, PP + 4, PP + 5, SUM, SUM + 3))
        a("v_mfma_f32_16x16x16_bf16 v[%d:%d], v[%d:%d], v[%d:%d], v[%d:%d]" % (OA, OA + 3, ACV, ACV + 1, PP + 4, PP + 5, OA, OA + 3))
        a("v_mfma_f32_16x16x16_bf16 v[%d:%d], v[%d:%d], v[%d:%d], v[%d:%d]" % (OA + 4, OA + 7, ACV, ACV + 1, PP + 6, PP + 7, OA + 4, OA + 7))
        a("v_and_b32 v%d, 0x70, v2" % (E_ + 5)); a("v_lshrrev_b32 v%d, 8, v2" % (E_ + 4)); a("v_lshl_add_u32 v%d, v%d, 7, v%d" % (E_ + 4, E_ + 4, E_ + 5))
        a("s_nop 2")
        a("v_rcp_f32 v0, v%d" % SUM)
        a("s_nop 1")
        for r in range(0, 8, 2): a("v_pk_mul_f32 v[%d:%d], v[%d:%d], v[0:1] op_sel_hi:[1,0]" % (OA + r, OA + r + 1, OA + r, OA + r + 1))
        a("v_cvt_pk_bf16_f32 v%d, v%d, v%d" % (E_, OA, OA + 1)); a("v_cvt_pk_bf16_f32 v%d, v%d, v%d" % (E_ + 1, OA + 2, OA + 3))
        a("v_cvt_pk_bf16_f32 v%d, v%d, v%d" % (E_ + 2, OA + 4, OA + 5)); a("v_cvt_pk_bf16_f32 v%d, v%d, v%d" % (E_ + 3, OA + 6, OA + 7))
        a("s_mov_b32 exec_lo, 0x00ff00ff"); a("s_mov_b32 exec_hi, 0x00ff00ff")
        a("ds_write2_b32 v10, v%d, v%d offset0:0 offset1:2" % (E_, E_ + 1)); lg.issue('ow')
        a("ds_write2_b32 v10, v%d, v%d offset0:64 offset1:66" % (E_ + 2, E_ + 3)); lg.issue('ow')
        a("s_mov_b64 exec, -1")
        l2half(U.bw[0], R6, 0); loc[U.bw[0]] = R6
        l2half(U.bw[0], R6, 1)
        lg.wait('ow')
        a("s_barrier")
        if fine == 2: a("s_memtime s[22:23]")
        st(7)
        OF = [R0, R0 + 4, R4, R4 + 4]
        for f in range(4):
            a("ds_read_b128 v[%d:%d], v%d offset:%d" % (OF[f], OF[f] + 3, E_ + 4, OST + f * 512)); lg.issue(('of', f))
        ball = []
        for key, dst in zip(U.b1, B1DST):
            for hf in range(2): ball.append((key, dst, hf))
        wside = ball[:4]; rest_b1 = ball[4:]
        PB = [E_ + 8, E_ + 10]
        def tile_mfmas(cg, t):
            d = E_ + 4 * t
            for c in range(2):
                key = ('o', cg * 2 + t, c); h = U.home[key]
                if h[0] == 'lds': lg.wait(key)
                elif h[0] == 'l2': vm.wait(key)
                b = breg(key)
                for hf in range(2):
                    lg.wait(('of', 2 * c + hf))
                    c_ = "0" if (c == 0 and hf == 0) else "v[%d:%d]" % (d, d + 3)
                    a("v_mfma_f32_16x16x32_bf16 v[%d:%d], v[%d:%d], %s, %s" % (d, d + 3, OF[2 * c + hf], OF[2 * c + hf] + 3, R(b + 4 * hf, 4), c_))
                    yield (c, hf)
                if h[0] == 'lds': pref()
        def epiA(cg):
            p = PB[cg % 2]
            a("s_mov_b32 exec_hi, 0")
            a("v_cvt_pk_bf16_f32 v%d, v%d, v%d" % (p, E_, E_ + 1)); a("v_cvt_pk_bf16_f32 v%d, v%d, v%d" % (p + 1, E_ + 2, E_ + 3))
            a("s_mov_b32 exec_hi, -1")
        def epiB(cg):
            p = PB[cg % 2]
            a("s_mov_b32 exec_lo, 0")
            a("v_cvt_pk_bf16_f32 v%d, v%d, v%d" % (p, E_ + 4, E_ + 5)); a("v_cvt_pk_bf16_f32 v%d, v%d, v%d" % (p + 1, E_ + 6, E_ + 7))
            a("s_mov_b32 exec_lo, -1")
            if par == 0: a("v_and_b32 v%d, 0xfffffffe, v%d" % (p, p))
            else: a("v_or_b32 v%d, 1, v%d" % (p, p))
            a("global_store_dwordx2 v5, v[%d:%d], s[%d:%d]" % (p, p + 1, 82 + 2 * cg, 83 + 2 * cg)); vm.issue('ps')
        for cg in range(5):
            if fine == 2: a("s_memtime s[%d:%d]" % (24 + 2 * cg, 25 + 2 * cg))
            for n, _ in enumerate(tile_mfmas(cg, 0)):
                if n == 2 and cg > 0: epiB(cg - 1)
                if n == 3 and wside and cg >= 1:
                    k_, d_, h_ = wside.pop(0); l2half(k_, d_, h_); loc[k_] = d_
            for n, _ in enumerate(tile_mfmas(cg, 1)):
                if n == 2: epiA(cg)
        a("s_nop 7")
        epiB(4)
        if fine == 2: a("s_memtime s[34:35]")
        assert not wside
        st(8)
        lred = a.uid("Lred"); lnr = a.uid("Lnr")
        a("s_cmp_ge_u32 s16, 80"); a("s_cbranch_scc1 " + lnr)
        a("v_lshrrev_b32 v0, 4, v2"); a("v_and_b32 v0, 15, v0")
        a("v_and_b32 v1, 1, v0"); a("v_lshlrev_b32 v1, 4, v1"); a("v_mov_b32 v%d, 0x3f80" % (E_ + 3)); a("v_lshlrev_b32 v1, v1, v%d" % (E_ + 3))
        a("v_lshrrev_b32 v0, 1, v0")
        for i in range(4):
            a("v_cmp_eq_u32 vcc, %d, v0" % i); a("s_nop 1"); a("v_cndmask_b32 v%d, 0, v1, vcc" % (E_ + 4 + i))
        if exp & 4: pass
        elif exp & 8: a("s_waitcnt vmcnt(%d)" % (((exp >> 8) & 7) or 2))
        else: a("s_waitcnt vmcnt(0)")
        if fine == 2: a("s_memtime s[36:37]")
        RD = [R0, R0 + 4, R4, R4 + 4]
        lp = a.uid("Lrpoll"); lchk = a.uid("Lrchk")
        if stamp: a("s_mov_b32 s46, 1")
        for j in range(4):
            a("global_load_dwordx4 v[%d:%d], v6, s[52:53] offset:%d sc1" % (RD[j], RD[j] + 3, j * 1024))
        for (k_, d_, h_) in rest_b1:
            l2half(k_, d_, h_); loc[k_] = d_
        a("s_waitcnt vmcnt(%d)" % len(rest_b1))
        a("s_branch " + lchk)
        a.label(lp)
        if stamp: a("s_add_u32 s46, s46, 1")
        for j in range(4):
            a("global_load_dwordx4 v[%d:%d], v6, s[52:53] offset:%d sc1" % (RD[j], RD[j] + 3, j * 1024))
        a("s_waitcnt vmcnt(0)")
        a.label(lchk)
        if fine == 2: a("s_memtime s[38:39]")
        dws = [RD[j] + 2 * i for j in range(4) for i in range(2)]
        def red_mfma():
            for j in range(4):
                c_ = "0" if j == 0 else "v[%d:%d]" % (E_, E_ + 3)
                a("v_mfma_f32_16x16x32_bf16 v[%d:%d], v[%d:%d], v[%d:%d], %s" % (E_, E_ + 3, RD[j], RD[j] + 3, E_ + 4, E_ + 7, c_))
        if exp & 16: red_mfma()
        if par == 0:
            a("v_or3_b32 v0, v%d, v%d, v%d" % tuple(dws[0:3])); a("v_or3_b32 v1, v%d, v%d, v%d" % tuple(dws[3:6]))
            a("v_or3_b32 v0, v0, v%d, v%d" % tuple(dws[6:8])); a("v_or_b32 v0, v0, v1")
            a("v_and_b32 v0, 1, v0"); a("v_cmp_ne_u32 vcc, 0, v0")
        else:
            a("v_and_b32 v0, v%d, v%d" % tuple(dws[0:2])); a("v_and_b32 v1, v%d, v%d" % tuple(dws[2:4]))
            a("v_and_b32 v0, v0, v%d" % dws[4]); a("v_and_b32 v1, v1, v%d" % dws[5])
            a("v_and_b32 v0, v0, v%d" % dws[6]); a("v_and_b32 v1, v1, v%d" % dws[7])
            a("v_and_b32 v0, v0, v1"); a("v_and_b32 v0, 1, v0"); a("v_cmp_eq_u32 vcc, 0, v0")
        a("s_sub_u32 s19, s19, 1"); a("s_cbranch_scc1 " + end)
        a("s_cbranch_vccnz " + lp)
        if not exp & 16: red_mfma()
        a("v_mov_b32 v1, -1")
        a("s_nop %d" % (2 if exp & 16 else 6))
        a("v_permlane32_swap_b32 v%d, v%d" % (E_, E_ + 2)); a("v_permlane32_swap_b32 v%d, v%d" % (E_ + 1, E_ + 3))
        a("v_add_f32 v%d, v%d, v%d" % (E_, E_, E_ + 2)); a("v_add_f32 v%d, v%d, v%d" % (E_ + 1, E_ + 1, E_ + 3))
        a("v_cvt_pk_bf16_f32 v0, v%d, v%d" % (E_, E_ + 1))
        a("v_min_u32 v0, 0xfffffffe, v0")
        a("s_mov_b32 exec_lo, 0x00ff00ff"); a("s_mov_b32 exec_hi, 0x00ff00ff")
        a("global_store_dword v7, v0, s[%d:%d]" % (78 + 2 * (1 - par), 79 + 2 * (1 - par)))
        a("global_store_dword v7, v1, s[%d:%d]" % (78 + 2 * par, 79 + 2 * par))
        a("s_mov_b64 exec, -1")
        if fine == 2: a("s_memtime s[40:41]")
        a("s_branch " + lred)
        a.label(lnr)
        for (k_, d_, h_) in rest_b1:
            l2half(k_, d_, h_)
        a.label(lred)
        for i in range(8): a("v_mov_b32 v%d, 0" % (R0 + i)); a("v_mov_b32 v%d, 0" % (R4 + i)); a("v_mov_b32 v%d, 0" % (R2 + i))
        st(9)
        a("s_barrier")
        if fine == 2: a("s_memtime s[42:43]")
        st(10)
        a("s_add_u32 s18, s18, 1")
        ptime("s18")
        if stamp:
            sk = a.uid("Lso")
            a("s_cmp_lg_u32 s18, %d" % (stamp + 1)); a("s_cbranch_scc1 " + sk)
            a("s_waitcnt lgkmcnt(0)")
            a("v_mov_b32 v0, 0")
            a("s_mov_b64 exec, 1")
            for i in range(13):
                a("v_mov_b32 v1, s%d" % (22 + 2 * i)); a("global_store_dword v0, v1, s[94:95] offset:%d" % (4 * i))
            a("s_mov_b64 exec, -1")
            a("s_waitcnt vmcnt(0)")
            a.label(sk)
        st(0)
        if nxt: a("s_branch " + nxt)

    a.label(loopA)
    step(0, entryA, None)
    a.label(loopB)
    step(1, None, loopA)
    a.label(fin)
    ptime(3)
    if merged:
        a("s_waitcnt vmcnt(0)")
        a("s_barrier")
        a("s_cmp_lg_u32 s10, 0"); a("s_cbranch_scc1 " + end)
        a("s_mov_b64 exec, 1")
        a("v_mov_b32 v0, s101"); a("v_mov_b32 v1, %d" % nsteps)
        a("global_store_dword v0, v1, s[4:5] sc1")
```

```python
from asmlib import *

NSTAGE = 4
STAGE_BYTES = 32768

def gemm_body(a, KSTEPS, lda, ldb, sA, sB0, sB1, gu=False, swap=False, swap_sreg=None, asc=''):
    ACC = 64
    a("v_lshrrev_b32 v12, 3, v2")
    a("v_and_b32 v13, 7, v2")
    a("v_xor_b32 v14, v13, v12")
    a("v_lshlrev_b32 v14, 4, v14")
    a("s_lshl_b32 s20, s10, 5")
    a("v_add_u32 v15, s20, v12")
    a("s_mov_b32 s21, %d" % lda)
    a("v_mul_lo_u32 v15, v15, s21")
    a("v_add_u32 v4, v15, v14")
    for i in range(1, 4): a("v_add_u32 v%d, %d, v4" % (4 + i, 8 * i * lda))
    a("v_bfe_u32 v14, v12, 1, 1")
    a("v_lshlrev_b32 v14, 2, v14")
    a("v_xor_b32 v14, v13, v14")
    a("v_lshlrev_b32 v14, 4, v14")
    a("s_and_b32 s20, s10, 1"); a("s_lshl_b32 s20, s20, 5")
    a("v_add_u32 v15, s20, v12")
    a("s_mov_b32 s21, %d" % ldb)
    a("v_mul_lo_u32 v15, v15, s21")
    a("v_add_u32 v8, v15, v14")
    for i in range(1, 4): a("v_add_u32 v%d, %d, v8" % (8 + i, 8 * i * ldb))
    a("s_cmp_ge_u32 s10, 2")
    a("s_cselect_b32 s22, %s, %s" % (S(sB1), S(sB0)))
    a("s_cselect_b32 s23, %s, %s" % (S(sB1 + 1), S(sB0 + 1)))
    a("s_mov_b32 s24, %s" % S(sA)); a("s_mov_b32 s25, %s" % S(sA + 1))
    a("s_lshl_b32 s26, s10, 12")
    a("s_lshr_b32 s27, s10, 1")
    a("s_and_b32 s28, s10, 1")
    a("v_and_b32 v12, 31, v2")
    a("s_lshl_b32 s20, s27, 6")
    a("v_add_u32 v12, s20, v12")
    a("v_lshlrev_b32 v12, 7, v12")
    a("v_lshrrev_b32 v13, 5, v2")
    a("v_and_b32 v14, 7, v2")
    a("v_xor_b32 v13, v13, v14")
    a("v_lshlrev_b32 v13, 4, v13")
    a("v_add_u32 v16, v12, v13")
    for ks in range(1, 4): a("v_xor_b32 v%d, %d, v16" % (16 + ks, ks * 32))
    a("v_bfe_u32 v12, v2, 4, 1")
    a("v_lshrrev_b32 v13, 5, v2")
    a("v_bfe_u32 v14, v2, 2, 2")
    a("v_and_b32 v15, 3, v2")
    a("v_lshlrev_b32 v20, 3, v13"); a("v_add_u32 v20, v20, v14"); a("v_lshlrev_b32 v20, 7, v20")
    a("v_lshlrev_b32 v21, 1, v12"); a("v_lshrrev_b32 v22, 1, v15"); a("v_add_u32 v21, v21, v22")
    if gu:
        a("s_lshl_b32 s20, s28, 2"); a("v_add_u32 v21, s20, v21")
    a("v_lshrrev_b32 v22, 1, v14"); a("v_lshlrev_b32 v22, 2, v22"); a("v_xor_b32 v21, v21, v22")
    a("v_lshlrev_b32 v21, 4, v21")
    a("v_and_b32 v22, 1, v15"); a("v_lshlrev_b32 v22, 3, v22")
    a("v_add3_u32 v20, v20, v21, v22")
    if gu:
        a("v_add_u32 v20, 16384, v20")
        a("v_add_u32 v21, 8192, v20")
    else:
        a("s_lshl_b32 s20, s28, 13"); a("s_add_u32 s20, s20, 16384")
        a("v_add_u32 v20, s20, v20")
        a("v_xor_b32 v21, 64, v20")
    for i in range(64): a("v_mov_b32 v%d, 0" % (ACC + i))

    def issue_stage(st):
        base = st * STAGE_BYTES
        for i in range(4):
            a("s_add_u32 m0, s26, %d" % (base + i * 1024))
            a("s_nop 0")
            a("global_load_lds_dwordx4 v%d, s[24:25]%s" % (4 + i, asc))
        for i in range(4):
            a("s_add_u32 m0, s26, %d" % (base + 16384 + i * 1024))
            a("s_nop 0")
            a("global_load_lds_dwordx4 v%d, s[22:23]" % (8 + i))
        a("s_add_u32 s24, s24, 128"); a("s_addc_u32 s25, s25, 0")
        a("s_add_u32 s22, s22, %d" % (64 * ldb)); a("s_addc_u32 s23, s23, 0")

    def read_frags(p, ks, off):
        fa = 24 + 16 * p; fb = 32 + 16 * p
        a("ds_read_b128 v[%d:%d], v%d offset:%d" % (fa, fa + 3, 16 + ks, off))
        a("ds_read_b128 v[%d:%d], v%d offset:%d" % (fa + 4, fa + 7, 16 + ks, off + 4096))
        for tj in range(2):
            for i in range(2):
                a("ds_read_b64_tr_b16 v[%d:%d], v%d offset:%d" % (fb + 4 * tj + 2 * i, fb + 4 * tj + 2 * i + 1, 20 + tj, off + ks * 2048 + i * 512))
    def mfmas(p, sw):
        fa = 24 + 16 * p; fb = 32 + 16 * p
        for ti in range(2):
            for tj in range(2):
                d = ACC + (ti * 2 + tj) * 16
                A_, B_ = "v[%d:%d]" % (fa + 4 * ti, fa + 4 * ti + 3), "v[%d:%d]" % (fb + 4 * tj, fb + 4 * tj + 3)
                if sw: A_, B_ = B_, A_
                a("v_mfma_f32_32x32x16_bf16 v[%d:%d], %s, %s, v[%d:%d]" % (d, d + 15, A_, B_, d, d + 15))

    npre = min(NSTAGE - 1, KSTEPS)
    for st in range(npre): issue_stage(st)

    def loop(sw):
        lp = a.uid("Lk");
        a("s_mov_b32 s29, 0")
        a("s_mov_b32 s30, 0")
        a("s_mov_b32 s31, %d" % ((npre % NSTAGE) * STAGE_BYTES))
        a.label(lp)
        l_tail = a.uid("Lt"); l_go = a.uid("Lg")
        a("s_cmp_ge_u32 s29, %d" % (KSTEPS - (NSTAGE - 2))); a("s_cbranch_scc1 " + l_tail)
        a("s_waitcnt vmcnt(%d)" % (8 * (NSTAGE - 2)))
        a("s_branch " + l_go)
        a.label(l_tail)
        a("s_waitcnt vmcnt(0)")
        a.label(l_go)
        a("s_barrier")
        l_noiss = a.uid("Ln")
        a("s_cmp_ge_u32 s29, %d" % (KSTEPS - (NSTAGE - 1))); a("s_cbranch_scc1 " + l_noiss)
        a("s_add_u32 s32, s26, s31")
        for i in range(4):
            a("s_add_u32 m0, s32, %d" % (i * 1024))
            a("s_nop 0")
            a("global_load_lds_dwordx4 v%d, s[24:25]%s" % (4 + i, asc))
        for i in range(4):
            a("s_add_u32 m0, s32, %d" % (16384 + i * 1024))
            a("s_nop 0")
            a("global_load_lds_dwordx4 v%d, s[22:23]" % (8 + i))
        a("s_add_u32 s24, s24, 128"); a("s_addc_u32 s25, s25, 0")
        a("s_add_u32 s22, s22, %d" % (64 * ldb)); a("s_addc_u32 s23, s23, 0")
        a("s_add_u32 s31, s31, %d" % STAGE_BYTES)
        a("s_cmp_eq_u32 s31, %d" % (NSTAGE * STAGE_BYTES)); a("s_cselect_b32 s31, 0, s31")
        a.label(l_noiss)
        for i in range(6): a("v_add_u32 v%d, s30, v%d" % (56 + i, 16 + i))
        def rf(p, ks):
            fa = 24 + 16 * p; fb = 32 + 16 * p
            a("ds_read_b128 v[%d:%d], v%d" % (fa, fa + 3, 56 + ks))
            a("ds_read_b128 v[%d:%d], v%d offset:4096" % (fa + 4, fa + 7, 56 + ks))
            for tj in range(2):
                for i in range(2):
                    a("ds_read_b64_tr_b16 v[%d:%d], v%d offset:%d" % (fb + 4 * tj + 2 * i, fb + 4 * tj + 2 * i + 1, 60 + tj, ks * 2048 + i * 512))
        rf(0, 0); rf(1, 1)
        a("s_waitcnt lgkmcnt(6)"); mfmas(0, sw); rf(0, 2)
        a("s_waitcnt lgkmcnt(6)"); mfmas(1, sw); rf(1, 3)
        a("s_waitcnt lgkmcnt(6)"); mfmas(0, sw)
        a("s_waitcnt lgkmcnt(0)"); mfmas(1, sw)
        a("s_add_u32 s30, s30, %d" % STAGE_BYTES)
        a("s_cmp_eq_u32 s30, %d" % (NSTAGE * STAGE_BYTES)); a("s_cselect_b32 s30, 0, s30")
        a("s_add_u32 s29, s29, 1")
        a("s_cmp_lt_u32 s29, %d" % KSTEPS); a("s_cbranch_scc1 " + lp)

    if swap_sreg is None:
        loop(swap)
    else:
        l1 = a.uid("Lsw"); l2 = a.uid("Lsd")
        a("s_cmp_lg_u32 %s, 0" % S(swap_sreg)); a("s_cbranch_scc1 " + l1)
        loop(False)
        a("s_branch " + l2)
        a.label(l1)
        loop(True)
        a.label(l2)
    a("s_nop 15")
    a("s_barrier")

def sdiv(a, q, r, x, d):
    magic = (2**32 + d - 1) // d
    a("s_mul_hi_u32 %s, %s, 0x%x" % (S(q), S(x), magic))
    a("s_mul_i32 %s, %s, %d" % (S(r), S(q), d))
    a("s_sub_u32 %s, %s, %s" % (S(r), S(x), S(r)))

def load_ptr(a, dst, what):
    a("s_load_dwordx2 %s, s[0:1], %d" % (S(dst, 2), KERNARG[what]))

def common_prologue(a, nwg, end):
    a("s_cmp_ge_u32 s2, %d" % nwg); a("s_cbranch_scc1 " + end)
    load_ptr(a, 4, 'ws')
    a("v_lshrrev_b32 v1, 6, v0")
    a("v_and_b32 v2, 63, v0")
    a("s_nop 0")
    a("v_readfirstlane_b32 s10, v1")

def add64(a, dst, src, imm_or_sreg):
    a("s_add_u32 %s, %s, %s" % (S(dst), S(src), imm_or_sreg))
    a("s_addc_u32 %s, %s, 0" % (S(dst + 1), S(src + 1)))

ACC = 64

def gen_qkv(a, name):
    kernel_header(a, name)
    end = a.uid("Lend")
    common_prologue(a, 1536, end)
    load_ptr(a, 40, 'Wq'); load_ptr(a, 42, 'Wk'); load_ptr(a, 44, 'Wv')
    a("s_waitcnt lgkmcnt(0)")
    sdiv(a, 12, 13, 2, 96)
    a("s_lshr_b32 s14, s13, 5")
    a("s_and_b32 s15, s13, 31")
    a("s_cmp_eq_u32 s14, 1"); a("s_cselect_b32 s40, s42, s40"); a("s_cselect_b32 s41, s43, s41")
    a("s_cmp_eq_u32 s14, 2"); a("s_cselect_b32 s40, s44, s40"); a("s_cselect_b32 s41, s45, s41")
    a("s_lshl_b32 s16, s15, 8")
    add64(a, 46, 40, "s16")
    add64(a, 48, 46, "128")
    a("s_mul_i32 s16, s12, %d" % (128 * 1280))
    add64(a, 50, 4, "0x%x" % WS['XN']); add64(a, 50, 50, "s16")
    a("s_cmp_lg_u32 s14, 2"); a("s_cselect_b32 s17, 1, 0")
    gemm_body(a, 10, 1280, 8192, 50, 46, 48, swap_sreg=17)
    a("s_lshl_b32 s16, s14, 24")
    a("s_add_u32 s16, s16, 0x%x" % WS['Q'])
    add64(a, 52, 4, "s16")
    a("s_lshl_b32 s18, s12, 2"); a("s_lshl_b32 s19, s27, 1"); a("s_add_u32 s18, s18, s19")
    a("s_lshl_b32 s18, s18, 5"); a("s_add_u32 s18, s18, s15"); a("s_lshl_b32 s18, s18, 13")
    add64(a, 52, 52, "s18")
    lv = a.uid("Lv"); ld = a.uid("Ld")
    a("s_cmp_eq_u32 s17, 0"); a("s_cbranch_scc1 " + lv)
    a("v_bfe_u32 v4, v2, 4, 1"); a("v_lshlrev_b32 v4, 12, v4")
    a("v_and_b32 v5, 15, v2"); a("v_lshlrev_b32 v5, 4, v5")
    a("v_lshrrev_b32 v6, 5, v2"); a("v_lshlrev_b32 v6, 3, v6")
    a("v_add3_u32 v4, v4, v5, v6")
    a("s_lshl_b32 s19, s28, 11")
    a("v_add_u32 v4, s19, v4")
    for ti in range(2):
        if ti == 1:
            a("v_add_u32 v4, %d, v4" % (32 * 8192))
        for tj in range(2):
            d = ACC + (ti * 2 + tj) * 16
            for q in range(4):
                a("v_cvt_pk_bf16_f32 v8, v%d, v%d" % (d + 4 * q, d + 4 * q + 1))
                a("v_cvt_pk_bf16_f32 v9, v%d, v%d" % (d + 4 * q + 2, d + 4 * q + 3))
                a("global_store_dwordx2 v4, v[8:9], s[52:53] offset:%d" % (tj * 1024 + q * 256))
                a("s_nop 1")
    a("s_branch " + ld)
    a.label(lv)
    a("v_bfe_u32 v4, v2, 4, 1"); a("v_lshlrev_b32 v4, 10, v4")
    a("v_and_b32 v5, 15, v2"); a("v_lshlrev_b32 v5, 4, v5")
    a("v_lshrrev_b32 v6, 5, v2"); a("v_lshlrev_b32 v6, 8, v6")
    a("v_add3_u32 v4, v4, v5, v6")
    a("s_lshl_b32 s19, s28, 12")
    a("v_add_u32 v4, s19, v4")
    for ti in range(2):
        if ti == 1:
            a("v_add_u32 v4, %d, v4" % (32 * 8192))
        for tj in range(2):
            d = ACC + (ti * 2 + tj) * 16
            for hq in range(2):
                q0, q1 = hq, hq + 2
                a("v_cvt_pk_bf16_f32 v8, v%d, v%d" % (d + 4 * q0, d + 4 * q0 + 1))
                a("v_cvt_pk_bf16_f32 v9, v%d, v%d" % (d + 4 * q0 + 2, d + 4 * q0 + 3))
                a("v_cvt_pk_bf16_f32 v10, v%d, v%d" % (d + 4 * q1, d + 4 * q1 + 1))
                a("v_cvt_pk_bf16_f32 v11, v%d, v%d" % (d + 4 * q1 + 2, d + 4 * q1 + 3))
                a("global_store_dwordx4 v4, v[8:11], s[52:53] offset:%d" % (tj * 2048 + hq * 512))
                a("s_nop 1")
    a.label(ld)
    a.label(end)
    a("s_endpgm")
    return kernel_desc(name, 128, 102, 128)

def rowmajor_epilogue(a, res_s, out_s, ld_bytes, ncolbase_s, act=False):
    a("v_and_b32 v4, 31, v2")
    a("s_lshl_b32 s19, s27, 6")
    a("v_add_u32 v4, s19, v4")
    a("s_mov_b32 s19, %d" % ld_bytes)
    a("v_mul_lo_u32 v4, v4, s19")
    a("v_lshrrev_b32 v6, 5, v2"); a("v_lshlrev_b32 v6, 3, v6")
    a("s_lshl_b32 s19, s28, 7")
    a("v_add3_u32 v4, v4, v6, s19")
    for ti in range(2):
        if ti == 1:
            a("v_add_u32 v4, %d, v4" % (32 * ld_bytes))
        for tj in range(2):
            for q in range(4):
                a("global_load_dwordx2 v[%d:%d], v4, %s offset:%d" % (24 + (tj * 4 + q) * 2, 25 + (tj * 4 + q) * 2, S(res_s, 2), tj * 64 + q * 16))
        a("s_waitcnt vmcnt(0)")
        for tj in range(2):
            d = ACC + (ti * 2 + tj) * 16
            for q in range(4):
                r = 24 + (tj * 4 + q) * 2
                a("v_cvt_pk_bf16_f32 v8, v%d, v%d" % (d + 4 * q, d + 4 * q + 1))
                a("v_cvt_pk_bf16_f32 v9, v%d, v%d" % (d + 4 * q + 2, d + 4 * q + 3))
                a("v_lshlrev_b32 v10, 16, v8"); a("v_and_b32 v11, 0xffff0000, v8")
                a("v_lshlrev_b32 v12, 16, v9"); a("v_and_b32 v13, 0xffff0000, v9")
                a("v_lshlrev_b32 v14, 16, v%d" % r); a("v_and_b32 v15, 0xffff0000, v%d" % r)
                a("v_add_f32 v10, v10, v14"); a("v_add_f32 v11, v11, v15")
                a("v_lshlrev_b32 v14, 16, v%d" % (r + 1)); a("v_and_b32 v15, 0xffff0000, v%d" % (r + 1))
                a("v_add_f32 v12, v12, v14"); a("v_add_f32 v13, v13, v15")
                a("v_cvt_pk_bf16_f32 v8, v10, v11"); a("v_cvt_pk_bf16_f32 v9, v12, v13")
                a("global_store_dwordx2 v4, v[8:9], %s offset:%d" % (S(out_s, 2), tj * 64 + q * 16))
                a("s_nop 1")

def gen_wo(a, name):
    kernel_header(a, name)
    end = a.uid("Lend")
    common_prologue(a, 80, end)
    load_ptr(a, 40, 'Wo'); load_ptr(a, 42, 'x')
    a("s_waitcnt lgkmcnt(0)")
    sdiv(a, 12, 13, 2, 5)
    a("s_lshl_b32 s16, s13, 8")
    add64(a, 46, 40, "s16"); add64(a, 48, 46, "128")
    a("s_mul_i32 s16, s12, %d" % (128 * 8192))
    add64(a, 50, 4, "0x%x" % WS['O']); add64(a, 50, 50, "s16")
    gemm_body(a, 64, 8192, 1280, 50, 46, 48, swap=True)
    a("s_mul_i32 s16, s12, %d" % (128 * 1280)); a("s_lshl_b32 s18, s13, 8"); a("s_add_u32 s16, s16, s18")
    add64(a, 52, 42, "s16")
    add64(a, 54, 4, "0x%x" % WS['H']); add64(a, 54, 54, "s16")
    rowmajor_epilogue(a, 52, 54, 1280, None)
    a.label(end); a("s_endpgm")
    return kernel_desc(name, 128, 102, 128)

def gen_down(a, name):
    kernel_header(a, name)
    end = a.uid("Lend")
    common_prologue(a, 80, end)
    load_ptr(a, 40, 'Wd'); load_ptr(a, 42, 'out')
    a("s_waitcnt lgkmcnt(0)")
    sdiv(a, 12, 13, 2, 5)
    a("s_lshl_b32 s16, s13, 8")
    add64(a, 46, 40, "s16"); add64(a, 48, 46, "128")
    a("s_mul_i32 s16, s12, %d" % (128 * 3456))
    add64(a, 50, 4, "0x%x" % WS['ACT']); add64(a, 50, 50, "s16")
    gemm_body(a, 27, 3456, 1280, 50, 46, 48, swap=True)
    a("s_mul_i32 s16, s12, %d" % (128 * 1280)); a("s_lshl_b32 s18, s13, 8"); a("s_add_u32 s16, s16, s18")
    add64(a, 52, 4, "0x%x" % WS['H']); add64(a, 52, 52, "s16")
    add64(a, 54, 42, "s16")
    rowmajor_epilogue(a, 52, 54, 1280, None)
    a.label(end); a("s_endpgm")
    return kernel_desc(name, 128, 102, 128)

def gen_gu(a, name):
    kernel_header(a, name)
    end = a.uid("Lend")
    common_prologue(a, 16 * 27, end)
    load_ptr(a, 40, 'Wg'); load_ptr(a, 42, 'Wu')
    a("s_waitcnt lgkmcnt(0)")
    sdiv(a, 12, 13, 2, 27)
    a("s_lshl_b32 s16, s13, 7")
    add64(a, 46, 40, "s16"); add64(a, 48, 42, "s16")
    a("s_mul_i32 s16, s12, %d" % (128 * 1280))
    add64(a, 50, 4, "0x%x" % WS['HN']); add64(a, 50, 50, "s16")
    gemm_body(a, 10, 1280, 3456, 50, 46, 48, gu=True, swap=True)
    a("s_mul_i32 s16, s12, %d" % (128 * 3456)); a("s_lshl_b32 s18, s13, 7"); a("s_add_u32 s16, s16, s18")
    add64(a, 54, 4, "0x%x" % WS['ACT']); add64(a, 54, 54, "s16")
    a("v_and_b32 v4, 31, v2")
    a("s_lshl_b32 s19, s27, 6")
    a("v_add_u32 v4, s19, v4")
    a("s_mov_b32 s19, 3456")
    a("v_mul_lo_u32 v4, v4, s19")
    a("v_lshrrev_b32 v6, 5, v2"); a("v_lshlrev_b32 v6, 3, v6")
    a("s_lshl_b32 s19, s28, 6")
    a("v_add3_u32 v4, v4, v6, s19")
    def rb(dst, src):
        a("v_cvt_pk_bf16_f32 v8, v%d, v%d" % (src, src + 1))
        a("v_lshlrev_b32 v%d, 16, v8" % dst); a("v_and_b32 v%d, 0xffff0000, v8" % (dst + 1))
    for ti in range(2):
        if ti == 1:
            a("v_add_u32 v4, %d, v4" % (32 * 3456))
        g = ACC + (ti * 2) * 16; u = ACC + (ti * 2 + 1) * 16
        for q in range(4):
            for pr in range(2):
                rb(10 + 2 * pr, g + 4 * q + 2 * pr)
                rb(14 + 2 * pr, u + 4 * q + 2 * pr)
            for j in range(4):
                a("v_mul_f32 v%d, 0xbfb8aa3b, v%d" % (20 + j, 10 + j))
            for j in range(4): a("v_exp_f32 v%d, v%d" % (20 + j, 20 + j))
            a("s_nop 0")
            for j in range(4): a("v_add_f32 v%d, 1.0, v%d" % (20 + j, 20 + j))
            for j in range(4): a("v_rcp_f32 v%d, v%d" % (20 + j, 20 + j))
            a("s_nop 0")
            for j in range(4): a("v_mul_f32 v%d, v%d, v%d" % (10 + j, 10 + j, 20 + j))
            rb(10, 10); rb(12, 12)
            for j in range(4): a("v_mul_f32 v%d, v%d, v%d" % (10 + j, 10 + j, 14 + j))
            a("v_cvt_pk_bf16_f32 v8, v10, v11"); a("v_cvt_pk_bf16_f32 v9, v12, v13")
            a("global_store_dwordx2 v4, v[8:9], s[54:55] offset:%d" % (q * 16))
            a("s_nop 1")
    a.label(end); a("s_endpgm")
    return kernel_desc(name, 128, 102, 128)
```

```python
from asmlib import *

def wave_sum(a, t, u):
    a("s_nop 1")
    a("v_add_f32_dpp %s, %s, %s quad_perm:[1,0,3,2] row_mask:0xf bank_mask:0xf" % (V(t), V(t), V(t)))
    a("s_nop 1")
    a("v_add_f32_dpp %s, %s, %s quad_perm:[2,3,0,1] row_mask:0xf bank_mask:0xf" % (V(t), V(t), V(t)))
    a("s_nop 1")
    a("v_add_f32_dpp %s, %s, %s row_half_mirror row_mask:0xf bank_mask:0xf" % (V(t), V(t), V(t)))
    a("s_nop 1")
    a("v_add_f32_dpp %s, %s, %s row_mirror row_mask:0xf bank_mask:0xf" % (V(t), V(t), V(t)))
    a("v_mov_b32 %s, %s" % (V(u), V(t)))
    a("s_nop 1")
    a("v_permlane16_swap_b32 %s, %s" % (V(t), V(u)))
    a("v_add_f32 %s, %s, %s" % (V(t), V(t), V(u)))
    a("v_mov_b32 %s, %s" % (V(u), V(t)))
    a("s_nop 1")
    a("v_permlane32_swap_b32 %s, %s" % (V(t), V(u)))
    a("v_add_f32 %s, %s, %s" % (V(t), V(t), V(u)))

def ln_row(a, sin, sout, voff):
    a("global_load_dwordx4 v[10:13], %s, %s" % (V(voff), S(sin, 2)))
    for i in range(14, 18): a("v_mov_b32 v%d, 0" % i)
    a("s_mov_b64 exec, 0xffff")
    a("global_load_dwordx4 v[14:17], %s, %s offset:1024" % (V(voff), S(sin, 2)))
    a("s_mov_b64 exec, -1")
    a("s_waitcnt vmcnt(0)")
    for i in range(8):
        a("v_lshlrev_b32 v%d, 16, v%d" % (20 + 2 * i, 10 + i))
        a("v_and_b32 v%d, 0xffff0000, v%d" % (21 + 2 * i, 10 + i))
    a("v_add_f32 v36, v20, v21")
    for i in range(22, 36): a("v_add_f32 v36, v36, v%d" % i)
    wave_sum(a, 36, 37)
    a("v_mul_f32 v36, 0x3acccccd, v36")
    for i in range(20, 28): a("v_sub_f32 v%d, v%d, v36" % (i, i))
    a("s_mov_b64 exec, 0xffff")
    for i in range(28, 36): a("v_sub_f32 v%d, v%d, v36" % (i, i))
    a("s_mov_b64 exec, -1")
    a("v_mul_f32 v38, v20, v20")
    for i in range(21, 36): a("v_fmac_f32 v38, v%d, v%d" % (i, i))
    wave_sum(a, 38, 37)
    a("v_mov_b32 v39, 0x3727c5ac")
    a("v_fmac_f32 v39, 0x3acccccd, v38")
    a("v_rsq_f32 v39, v39")
    a("s_nop 0")
    for i in range(20, 36): a("v_mul_f32 v%d, v%d, v39" % (i, i))
    for i in range(8): a("v_cvt_pk_bf16_f32 v%d, v%d, v%d" % (10 + i, 20 + 2 * i, 21 + 2 * i))
    a("global_store_dwordx4 %s, v[10:13], %s" % (V(voff), S(sout, 2)))
    a("s_mov_b64 exec, 0xffff")
    a("global_store_dwordx4 %s, v[14:17], %s offset:1024" % (V(voff), S(sout, 2)))
    a("s_mov_b64 exec, -1")

def gen_ln(a, name, src, dst_ws):
    kernel_header(a, name)
    end = a.uid("Lend")
    a("s_cmp_ge_u32 s2, 512"); a("s_cbranch_scc1 " + end)
    a("s_load_dwordx2 s[4:5], s[0:1], %d" % KERNARG['ws'])
    if src[0] == 'arg':
        a("s_load_dwordx2 s[6:7], s[0:1], %d" % KERNARG[src[1]])
    a("v_lshrrev_b32 v1, 6, v0")
    a("v_and_b32 v2, 63, v0")
    a("v_lshlrev_b32 v3, 4, v2")
    a("v_readfirstlane_b32 s10, v1")
    a("s_waitcnt lgkmcnt(0)")
    if src[0] == 'ws':
        a("s_add_u32 s6, s4, 0x%x" % src[1]); a("s_addc_u32 s7, s5, 0")
    a("s_lshl_b32 s11, s2, 2"); a("s_add_u32 s11, s11, s10")
    a("s_mul_i32 s12, s11, 1280")
    a("s_add_u32 s6, s6, s12"); a("s_addc_u32 s7, s7, 0")
    a("s_add_u32 s8, s4, 0x%x" % dst_ws); a("s_addc_u32 s9, s5, 0")
    a("s_add_u32 s8, s8, s12"); a("s_addc_u32 s9, s9, 0")
    ln_row(a, 6, 8, 3)
    a.label(end)
    a("s_endpgm")
    return kernel_desc(name, 64, 32, 64)


def ln_load(a, sin, voff, o=0):
    a("global_load_dwordx4 v[%d:%d], %s, %s" % (10 + o, 13 + o, V(voff), S(sin, 2)))
    for i in range(14, 18): a("v_mov_b32 v%d, 0" % (i + o))
    a("s_mov_b64 exec, 0xffff")
    a("global_load_dwordx4 v[%d:%d], %s, %s offset:1024" % (14 + o, 17 + o, V(voff), S(sin, 2)))
    a("s_mov_b64 exec, -1")

def ln_compute(a, sout, voff, o=0, sc=""):
    for i in range(8):
        a("v_lshlrev_b32 v%d, 16, v%d" % (20 + 2 * i + o, 10 + i + o))
        a("v_and_b32 v%d, 0xffff0000, v%d" % (21 + 2 * i + o, 10 + i + o))
    a("v_add_f32 v%d, v%d, v%d" % (36 + o, 20 + o, 21 + o))
    for i in range(22, 36): a("v_add_f32 v%d, v%d, v%d" % (36 + o, 36 + o, i + o))
    wave_sum(a, 36 + o, 37 + o)
    a("v_mul_f32 v%d, 0x3acccccd, v%d" % (36 + o, 36 + o))
    for i in range(20, 28): a("v_sub_f32 v%d, v%d, v%d" % (i + o, i + o, 36 + o))
    a("s_mov_b64 exec, 0xffff")
    for i in range(28, 36): a("v_sub_f32 v%d, v%d, v%d" % (i + o, i + o, 36 + o))
    a("s_mov_b64 exec, -1")
    a("v_mul_f32 v%d, v%d, v%d" % (38 + o, 20 + o, 20 + o))
    for i in range(21, 36): a("v_fmac_f32 v%d, v%d, v%d" % (38 + o, i + o, i + o))
    wave_sum(a, 38 + o, 37 + o)
    a("v_mov_b32 v%d, 0x3727c5ac" % (39 + o))
    a("v_fmac_f32 v%d, 0x3acccccd, v%d" % (39 + o, 38 + o))
    a("v_rsq_f32 v%d, v%d" % (39 + o, 39 + o))
    a("s_nop 0")
    for i in range(20, 36): a("v_mul_f32 v%d, v%d, v%d" % (i + o, i + o, 39 + o))
    for i in range(8): a("v_cvt_pk_bf16_f32 v%d, v%d, v%d" % (10 + i + o, 20 + 2 * i + o, 21 + 2 * i + o))
    a("global_store_dwordx4 %s, v[%d:%d], %s%s" % (V(voff), 10 + o, 13 + o, S(sout, 2), sc))
    a("s_mov_b64 exec, 0xffff")
    a("global_store_dwordx4 %s, v[%d:%d], %s offset:1024%s" % (V(voff), 14 + o, 17 + o, S(sout, 2), sc))
    a("s_mov_b64 exec, -1")
```

```python
from asmlib import *
from k_gemm import *
from k_attn import C_SCALE, xmax_groups as xmax_attn
import k_attn
from k_ln import wave_sum, ln_row, ln_load, ln_compute
import k_chain13 as k_chain

SC = " sc1"
SK3 = 4
PB = 32 + 5 * SK3 + 4 + 27 + 5
CTRL = 131072

def gen_prep(a, name, hz=True):
    kernel_header(a, name)
    end = a.uid("Lend")
    a("s_cmp_ge_u32 s2, 512"); a("s_cbranch_scc1 " + end)
    a("s_load_dwordx2 s[4:5], s[0:1], %d" % KERNARG['ws'])
    a("s_load_dwordx2 s[6:7], s[0:1], %d" % KERNARG['x'])
    a("v_lshrrev_b32 v1, 6, v0")
    a("v_and_b32 v2, 63, v0")
    a("v_lshlrev_b32 v3, 4, v2")
    a("v_readfirstlane_b32 s10, v1")
    a("s_waitcnt lgkmcnt(0)")
    a("s_lshl_b32 s11, s2, 2"); a("s_add_u32 s11, s11, s10")
    a("s_mul_i32 s12, s11, 1280")
    a("s_add_u32 s6, s6, s12"); a("s_addc_u32 s7, s7, 0")
    add64(a, 8, 4, "0x%x" % WS['XN']); add64(a, 8, 8, "s12")
    for i in range(4): a("v_mov_b32 v%d, 0" % (50 + i))
    sk = a.uid("Lsk")
    a("s_cmp_ge_u32 s11, 72"); a("s_cbranch_scc1 " + sk)
    a("s_lshl_b32 s12, s11, 10")
    add64(a, 14, 4, "0x%x" % WS['FLAGS']); add64(a, 14, 14, "s12")
    a("global_store_dwordx4 v3, v[50:53], s[14:15]")
    a.label(sk)
    ln_row(a, 6, 8, 3)
    a.label(end)
    a("s_endpgm")
    return kernel_desc(name, 64, 32, 64)

def task_qkv(a):
    load_ptr(a, 40, 'Wq'); load_ptr(a, 42, 'Wk'); load_ptr(a, 44, 'Wv')
    a("s_lshr_b32 s14, s13, 5"); a("s_add_u32 s14, s14, 1"); a("s_cmp_eq_u32 s14, 3"); a("s_cselect_b32 s14, 0, s14")
    a("s_and_b32 s15, s13, 31")
    a("s_waitcnt lgkmcnt(0)")
    a("s_cmp_eq_u32 s14, 1"); a("s_cselect_b32 s40, s42, s40"); a("s_cselect_b32 s41, s43, s41")
    a("s_cmp_eq_u32 s14, 2"); a("s_cselect_b32 s40, s44, s40"); a("s_cselect_b32 s41, s45, s41")
    a("s_lshl_b32 s16, s15, 8")
    add64(a, 46, 40, "s16"); add64(a, 48, 46, "128")
    a("s_mul_i32 s16, s12, %d" % (128 * 1280))
    add64(a, 50, 4, "0x%x" % WS['XN']); add64(a, 50, 50, "s16")
    a("s_cmp_lg_u32 s14, 2"); a("s_cselect_b32 s17, 1, 0")
    gemm_body(a, 10, 1280, 8192, 50, 46, 48, swap_sreg=17)
    a("s_lshl_b32 s16, s14, 24")
    a("s_add_u32 s16, s16, 0x%x" % WS['Q'])
    add64(a, 52, 4, "s16")
    a("s_lshl_b32 s18, s12, 2"); a("s_lshl_b32 s19, s27, 1"); a("s_add_u32 s18, s18, s19")
    a("s_lshl_b32 s18, s18, 5"); a("s_add_u32 s18, s18, s15"); a("s_lshl_b32 s18, s18, 13")
    add64(a, 52, 52, "s18")
    lv = a.uid("Lv"); ld = a.uid("Ld")
    a("s_cmp_eq_u32 s17, 0"); a("s_cbranch_scc1 " + lv)
    a("v_bfe_u32 v4, v2, 4, 1"); a("v_lshlrev_b32 v4, 12, v4")
    a("v_and_b32 v5, 15, v2"); a("v_lshlrev_b32 v5, 4, v5")
    a("v_lshrrev_b32 v6, 5, v2"); a("v_lshlrev_b32 v6, 8, v6")
    a("v_add3_u32 v4, v4, v5, v6")
    a("s_lshl_b32 s19, s28, 11")
    a("v_add_u32 v4, s19, v4")
    for ti in range(2):
        if ti == 1: a("v_add_u32 v4, %d, v4" % (32 * 8192))
        for tj in range(2):
            d = ACC + (ti * 2 + tj) * 16
            for qp in range(2):
                q0, q1 = 2 * qp, 2 * qp + 1
                a("v_cvt_pk_bf16_f32 v8, v%d, v%d" % (d + 4 * q0, d + 4 * q0 + 1))
                a("v_cvt_pk_bf16_f32 v9, v%d, v%d" % (d + 4 * q0 + 2, d + 4 * q0 + 3))
                a("v_cvt_pk_bf16_f32 v10, v%d, v%d" % (d + 4 * q1, d + 4 * q1 + 1))
                a("v_cvt_pk_bf16_f32 v11, v%d, v%d" % (d + 4 * q1 + 2, d + 4 * q1 + 3))
                a("s_nop 1")
                a("v_permlane32_swap_b32 v8, v10"); a("v_permlane32_swap_b32 v9, v11")
                a("global_store_dwordx4 v4, v[8:11], s[52:53] offset:%d%s" % (tj * 1024 + qp * 512, SC))
                a("s_nop 1")
    a("s_branch " + ld)
    a.label(lv)
    a("v_bfe_u32 v4, v2, 4, 1"); a("v_lshlrev_b32 v4, 10, v4")
    a("v_and_b32 v5, 15, v2"); a("v_lshlrev_b32 v5, 4, v5")
    a("v_lshrrev_b32 v6, 5, v2"); a("v_lshlrev_b32 v6, 8, v6")
    a("v_add3_u32 v4, v4, v5, v6")
    a("s_lshl_b32 s19, s28, 12")
    a("v_add_u32 v4, s19, v4")
    for ti in range(2):
        if ti == 1: a("v_add_u32 v4, %d, v4" % (32 * 8192))
        for tj in range(2):
            d = ACC + (ti * 2 + tj) * 16
            for hq in range(2):
                q0, q1 = hq, hq + 2
                a("v_cvt_pk_bf16_f32 v8, v%d, v%d" % (d + 4 * q0, d + 4 * q0 + 1))
                a("v_cvt_pk_bf16_f32 v9, v%d, v%d" % (d + 4 * q0 + 2, d + 4 * q0 + 3))
                a("v_cvt_pk_bf16_f32 v10, v%d, v%d" % (d + 4 * q1, d + 4 * q1 + 1))
                a("v_cvt_pk_bf16_f32 v11, v%d, v%d" % (d + 4 * q1 + 2, d + 4 * q1 + 3))
                a("global_store_dwordx4 v4, v[8:11], s[52:53] offset:%d%s" % (tj * 2048 + hq * 512, SC))
                a("s_nop 1")
    a.label(ld)

def task_attn(a):
    txt_before = len(a.lines)
    k_attn.attn_body(a)
    for i in range(txt_before, len(a.lines)):
        l = a.lines[i]
        if l.strip().startswith("global_load") or l.strip().startswith("global_store"):
            a.lines[i] = l + SC

def task_wo(a):
    load_ptr(a, 40, 'Wo')
    a("s_waitcnt lgkmcnt(0)")
    KS = 64 // SK3
    a("s_lshl_b32 s16, s13, 8"); a("s_mul_i32 s17, s14, %d" % (KS * 64 * 1280)); a("s_add_u32 s16, s16, s17")
    add64(a, 46, 40, "s16"); add64(a, 48, 46, "128")
    a("s_mul_i32 s16, s12, %d" % (128 * 8192)); a("s_mul_i32 s17, s14, %d" % (KS * 128)); a("s_add_u32 s16, s16, s17")
    add64(a, 50, 4, "0x%x" % WS['O']); add64(a, 50, 50, "s16")
    gemm_body(a, KS, 8192, 1280, 50, 46, 48, swap=False, asc=SC)
    a("s_mul_i32 s16, s12, %d" % (128 * 2560)); a("s_lshl_b32 s18, s13, 9"); a("s_add_u32 s16, s16, s18")
    add64(a, 54, 4, "0x%x" % WS['HACC']); add64(a, 54, 54, "s16")
    a("v_lshrrev_b32 v6, 5, v2"); a("v_lshlrev_b32 v6, 2, v6")
    a("s_lshl_b32 s19, s27, 6"); a("v_add_u32 v6, s19, v6")
    a("s_mov_b32 s19, 2560"); a("v_mul_lo_u32 v4, v6, s19")
    a("v_and_b32 v5, 31, v2"); a("v_lshlrev_b32 v5, 2, v5")
    a("s_lshl_b32 s19, s28, 8")
    a("v_add3_u32 v4, v4, v5, s19")
    for ti in range(2):
        for r in range(16):
            row = ti * 32 + 8 * (r // 4) + (r % 4)
            a("v_add_u32 v8, %d, v4" % (row * 2560))
            for tj in range(2):
                d = ACC + (ti * 2 + tj) * 16 + r
                a("global_atomic_add_f32 v8, v%d, s[54:55] offset:%d" % (d, tj * 128))

def task_ln2(a):
    load_ptr(a, 40, 'x')
    a("v_lshlrev_b32 v3, 4, v2")
    a("v_lshlrev_b32 v4, 5, v2")
    a("s_lshl_b32 s14, s12, 7"); a("s_lshl_b32 s15, s13, 5"); a("s_add_u32 s14, s14, s15"); a("s_lshl_b32 s15, s10, 3"); a("s_add_u32 s14, s14, s15")
    a("s_waitcnt lgkmcnt(0)")
    a("s_mov_b32 s20, 0")
    lp = a.uid("Lln")
    a.label(lp)
    a("s_add_u32 s15, s14, s20")
    a("s_mul_i32 s16, s15, 1280"); a("s_mul_i32 s17, s15, 2560")
    add64(a, 42, 40, "s16")
    add64(a, 44, 4, "0x%x" % WS['HACC']); add64(a, 44, 44, "s17")
    add64(a, 46, 4, "0x%x" % WS['H']); add64(a, 46, 46, "s16")
    add64(a, 48, 4, "0x%x" % WS['HN']); add64(a, 48, 48, "s16")
    a("global_load_dwordx4 v[10:13], v3, s[42:43]")
    a("global_load_dwordx4 v[46:49], v4, s[44:45]%s" % SC); a("global_load_dwordx4 v[50:53], v4, s[44:45] offset:16%s" % SC)
    for i in range(14, 18): a("v_mov_b32 v%d, 0" % i)
    for i in range(54, 62): a("v_mov_b32 v%d, 0" % i)
    a("s_mov_b64 exec, 0xffff")
    a("global_load_dwordx4 v[14:17], v3, s[42:43] offset:1024")
    a("global_load_dwordx4 v[54:57], v4, s[44:45] offset:2048%s" % SC); a("global_load_dwordx4 v[58:61], v4, s[44:45] offset:2064%s" % SC)
    a("s_mov_b64 exec, -1")
    a("s_waitcnt vmcnt(0)")
    for i in range(8):
        a("v_cvt_pk_bf16_f32 v36, v%d, v%d" % (46 + 2 * i, 47 + 2 * i))
        a("v_lshlrev_b32 v37, 16, v36"); a("v_and_b32 v38, 0xffff0000, v36")
        a("v_lshlrev_b32 v39, 16, v%d" % (10 + i)); a("v_and_b32 v40, 0xffff0000, v%d" % (10 + i))
        a("v_add_f32 v37, v37, v39"); a("v_add_f32 v38, v38, v40")
        a("v_cvt_pk_bf16_f32 v%d, v37, v38" % (10 + i))
        a("v_lshlrev_b32 v%d, 16, v%d" % (20 + 2 * i, 10 + i)); a("v_and_b32 v%d, 0xffff0000, v%d" % (21 + 2 * i, 10 + i))
    a("global_store_dwordx4 v3, v[10:13], s[46:47]%s" % SC)
    a("s_mov_b64 exec, 0xffff")
    a("global_store_dwordx4 v3, v[14:17], s[46:47] offset:1024%s" % SC)
    a("s_mov_b64 exec, -1")
    a("v_add_f32 v36, v20, v21")
    for i in range(22, 36): a("v_add_f32 v36, v36, v%d" % i)
    wave_sum(a, 36, 37)
    a("v_mul_f32 v36, 0x3acccccd, v36")
    for i in range(20, 28): a("v_sub_f32 v%d, v%d, v36" % (i, i))
    a("s_mov_b64 exec, 0xffff")
    for i in range(28, 36): a("v_sub_f32 v%d, v%d, v36" % (i, i))
    a("s_mov_b64 exec, -1")
    a("v_mul_f32 v38, v20, v20")
    for i in range(21, 36): a("v_fmac_f32 v38, v%d, v%d" % (i, i))
    wave_sum(a, 38, 37)
    a("v_mov_b32 v39, 0x3727c5ac")
    a("v_fmac_f32 v39, 0x3acccccd, v38")
    a("v_rsq_f32 v39, v39")
    a("s_nop 0")
    for i in range(20, 36): a("v_mul_f32 v%d, v%d, v39" % (i, i))
    for i in range(8): a("v_cvt_pk_bf16_f32 v%d, v%d, v%d" % (62 + i, 20 + 2 * i, 21 + 2 * i))
    a("global_store_dwordx4 v3, v[62:65], s[48:49]%s" % SC)
    a("s_mov_b64 exec, 0xffff")
    a("global_store_dwordx4 v3, v[66:69], s[48:49] offset:1024%s" % SC)
    a("s_mov_b64 exec, -1")
    a("s_add_u32 s20, s20, 1"); a("s_cmp_lt_u32 s20, 8"); a("s_cbranch_scc1 " + lp)

def task_gu(a):
    load_ptr(a, 40, 'Wg'); load_ptr(a, 42, 'Wu')
    a("s_waitcnt lgkmcnt(0)")
    a("s_lshl_b32 s16, s13, 7")
    add64(a, 46, 40, "s16"); add64(a, 48, 42, "s16")
    a("s_mul_i32 s16, s12, %d" % (128 * 1280))
    add64(a, 50, 4, "0x%x" % WS['HN']); add64(a, 50, 50, "s16")
    gemm_body(a, 10, 1280, 3456, 50, 46, 48, gu=True, swap=True, asc=SC)
    a("s_mul_i32 s16, s12, %d" % (128 * 3456)); a("s_lshl_b32 s18, s13, 7"); a("s_add_u32 s16, s16, s18")
    add64(a, 54, 4, "0x%x" % WS['ACT']); add64(a, 54, 54, "s16")
    a("v_and_b32 v4, 31, v2")
    a("s_lshl_b32 s19, s27, 6")
    a("v_add_u32 v4, s19, v4")
    a("s_mov_b32 s19, 3456")
    a("v_mul_lo_u32 v4, v4, s19")
    a("v_lshrrev_b32 v6, 5, v2"); a("v_lshlrev_b32 v6, 4, v6")
    a("s_lshl_b32 s19, s28, 6")
    a("v_add3_u32 v4, v4, v6, s19")
    def rb(dst, src):
        a("v_cvt_pk_bf16_f32 v8, v%d, v%d" % (src, src + 1))
        a("v_lshlrev_b32 v%d, 16, v8" % dst); a("v_and_b32 v%d, 0xffff0000, v8" % (dst + 1))
    for ti in range(2):
        if ti == 1: a("v_add_u32 v4, %d, v4" % (32 * 3456))
        g = ACC + (ti * 2) * 16; u = ACC + (ti * 2 + 1) * 16
        for qp in range(2):
            for qq in range(2):
                q = 2 * qp + qq
                for pr in range(2):
                    rb(10 + 2 * pr, g + 4 * q + 2 * pr); rb(14 + 2 * pr, u + 4 * q + 2 * pr)
                for j in range(4): a("v_mul_f32 v%d, 0xbfb8aa3b, v%d" % (20 + j, 10 + j))
                for j in range(4): a("v_exp_f32 v%d, v%d" % (20 + j, 20 + j))
                a("s_nop 0")
                for j in range(4): a("v_add_f32 v%d, 1.0, v%d" % (20 + j, 20 + j))
                for j in range(4): a("v_rcp_f32 v%d, v%d" % (20 + j, 20 + j))
                a("s_nop 0")
                for j in range(4): a("v_mul_f32 v%d, v%d, v%d" % (10 + j, 10 + j, 20 + j))
                rb(10, 10); rb(12, 12)
                for j in range(4): a("v_mul_f32 v%d, v%d, v%d" % (10 + j, 10 + j, 14 + j))
                a("v_cvt_pk_bf16_f32 v%d, v10, v11" % (24 + 2 * qq)); a("v_cvt_pk_bf16_f32 v%d, v12, v13" % (25 + 2 * qq))
            a("s_nop 1")
            a("v_permlane32_swap_b32 v24, v26"); a("v_permlane32_swap_b32 v25, v27")
            a("global_store_dwordx4 v4, v[24:27], s[54:55] offset:%d%s" % (qp * 32, SC))
            a("s_nop 1")

def task_down(a):
    load_ptr(a, 40, 'Wd'); load_ptr(a, 42, 'out')
    a("s_waitcnt lgkmcnt(0)")
    a("s_lshl_b32 s16, s13, 8")
    add64(a, 46, 40, "s16"); add64(a, 48, 46, "128")
    a("s_mul_i32 s16, s12, %d" % (128 * 3456))
    add64(a, 50, 4, "0x%x" % WS['ACT']); add64(a, 50, 50, "s16")
    gemm_body(a, 27, 3456, 1280, 50, 46, 48, swap=True, asc=SC)
    a("s_mul_i32 s16, s12, %d" % (128 * 1280)); a("s_lshl_b32 s18, s13, 8"); a("s_add_u32 s16, s16, s18")
    add64(a, 52, 4, "0x%x" % WS['H']); add64(a, 52, 52, "s16")
    add64(a, 54, 42, "s16")
    n0 = len(a.lines)
    rowmajor_epilogue(a, 52, 54, 1280, None)
    for i in range(n0, len(a.lines)):
        if a.lines[i].strip().startswith("global_load"): a.lines[i] += SC

def poll_ge(a, soff, target, fail, nd=1):
    lp = a.uid("Lp"); ok = a.uid("Lok")
    a("v_mov_b32 v20, %s" % soff)
    a.label(lp)
    if nd == 1:
        a("global_load_dword v21, v20, s[4:5] sc1")
        a("s_waitcnt vmcnt(0)")
    else:
        a("global_load_dwordx4 v[24:27], v20, s[4:5] sc1")
        a("s_waitcnt vmcnt(0)")
        a("v_min_u32 v21, v24, v25"); a("v_min_u32 v22, v26, v27"); a("v_min_u32 v21, v21, v22")
        a("s_nop 0")
    a("v_readfirstlane_b32 s62, v21")
    a("s_nop 3")
    a("s_cmp_ge_u32 s62, %s" % target); a("s_cbranch_scc1 " + ok)
    a("s_sleep 4")
    a("s_sub_u32 s63, s63, 1"); a("s_cbranch_scc0 " + lp)
    a("s_branch " + fail)
    a.label(ok)

def worker(a, end, prof=0, single=False, thr=0):
    import k_post
    from k_post import N_AT, N_WO, N_GU, N_DN, N_LN
    a("v_and_b32 v2, 63, v0")
    a("s_mov_b32 s63, 6000000")
    a("s_mov_b32 s96, -1"); a("s_mov_b32 s97, 0")
    a("s_mov_b32 s59, 0"); a("s_mov_b32 s57, 0")
    def fetch(off, dst):
        nf = a.uid("Lnf")
        a("s_cmp_lg_u32 s10, 0"); a("s_cbranch_scc1 " + nf)
        a("s_mov_b64 exec, 1")
        a("v_mov_b32 v20, %s" % (off if isinstance(off, str) else "0x%x" % off)); a("v_mov_b32 v21, 1")
        a("global_atomic_add v22, v20, v21, s[6:7] sc0")
        a("s_waitcnt vmcnt(0)")
        a("v_mov_b32 v20, %d" % k_post.CTRL)
        a("ds_write_b32 v20, v22")
        a("s_waitcnt lgkmcnt(0)")
        a("s_mov_b64 exec, -1")
        a.label(nf)
        a("s_barrier")
        a("v_mov_b32 v20, %d" % k_post.CTRL)
        a("ds_read_b32 v22, v20")
        a("s_waitcnt lgkmcnt(0)")
        a("v_readfirstlane_b32 %s, v22" % dst)
        a("s_nop 3")
        a("s_barrier")
    top = a.uid("Lw"); roles = a.uid("Lroles")
    a("v_mov_b32 v20, %d" % DB_WIN)
    a("global_load_dword v21, v20, s[6:7] sc1")
    a("s_waitcnt vmcnt(0)")
    a("v_readfirstlane_b32 s67, v21")
    a("s_nop 3")
    a("s_mov_b32 s68, s3")
    a("s_cmp_ge_u32 s3, s67"); a("s_cselect_b32 s69, 1, 0")
    a("s_cmp_eq_u32 s67, 0"); a("s_cselect_b32 s69, 0, s69")
    a("s_sub_u32 s68, s68, s69"); a("s_min_u32 s68, s68, 6")
    if single == 2:
        ltop = a.uid("Llq"); ldone = a.uid("Llqd"); lgo = a.uid("Llqg")
        a("s_mov_b32 s56, s68"); a("s_mov_b32 s69, 0")
        load_ptr(a, 40, 'x')
        a("v_lshlrev_b32 v3, 4, v2")
        for i in range(4): a("v_mov_b32 v%d, 0" % (100 + i))
        a.label(ltop)
        a("s_lshl_b32 s77, s56, 2"); a("s_add_u32 s77, s77, %d" % DB_LQ)
        fetch("s77", "s60")
        a("s_mul_i32 s60, s60, 7"); a("s_add_u32 s60, s60, s56")
        a("s_cmp_lt_u32 s60, 256"); a("s_cbranch_scc1 " + lgo)
        skb = a.uid("Lsb")
        a("s_cmp_lg_u32 s10, 0"); a("s_cbranch_scc1 " + skb)
        a("v_lshlrev_b32 v20, 2, v2")
        a("s_mov_b64 exec, 0x7f")
        a("global_load_dword v21, v20, s[6:7] offset:%d sc1" % DB_LQ)
        a("s_waitcnt vmcnt(0)")
        a("v_mul_u32_u24 v21, 7, v21"); a("v_add_u32 v21, v21, v2")
        a("v_cmp_gt_u32 vcc, 256, v21")
        a("s_mov_b64 exec, -1")
        a("s_nop 3")
        a("s_and_b32 s56, vcc_lo, 0x7f")
        a("v_mov_b32 v20, %d" % (k_post.CTRL + 64)); a("v_mov_b32 v21, s56"); a("ds_write_b32 v20, v21"); a("s_waitcnt lgkmcnt(0)")
        a.label(skb)
        a("s_barrier")
        a("v_mov_b32 v20, %d" % (k_post.CTRL + 64)); a("ds_read_b32 v21, v20"); a("s_waitcnt lgkmcnt(0)")
        a("v_readfirstlane_b32 s56, v21"); a("s_nop 3")
        a("s_barrier")
        a("s_cmp_eq_u32 s56, 0"); a("s_cbranch_scc1 " + ldone)
        a("s_ff1_i32_b32 s56, s56")
        a("s_add_u32 s69, s69, 1"); a("s_cmp_lt_u32 s69, 64"); a("s_cbranch_scc1 " + ltop)
        a("s_branch " + ldone)
        a.label(lgo)
        a("s_waitcnt lgkmcnt(0)")
        a("s_lshl_b32 s11, s60, 3"); a("s_lshl_b32 s12, s10, 1"); a("s_add_u32 s11, s11, s12")
        a("s_mul_i32 s12, s11, 1280")
        add64(a, 16, 40, "s12"); add64(a, 18, 4, "0x%x" % WS['XN']); add64(a, 18, 18, "s12")
        add64(a, 20, 16, "1280"); add64(a, 22, 18, "1280")
        ln_load(a, 16, 3, 0); ln_load(a, 20, 3, 40)
        a("s_waitcnt vmcnt(0)")
        ln_compute(a, 18, 3, 0, " sc1"); ln_compute(a, 22, 3, 40, " sc1")
        sk = a.uid("Lz")
        a("s_cmp_lg_u32 s10, 0"); a("s_cbranch_scc1 " + sk)
        a("s_mov_b64 exec, 0xff")
        sk2 = a.uid("Lz2")
        a("s_and_b32 s12, s60, 3"); a("s_cmp_lg_u32 s12, 0"); a("s_cbranch_scc1 " + sk2)
        a("s_lshl_b32 s12, s60, 5")
        a("s_add_u32 s13, s12, 0x%x" % k_post.SEGF0); a("v_add_u32 v4, s13, v3"); a("global_store_dwordx4 v4, v[100:103], s[4:5] sc1")
        a("s_add_u32 s13, s12, 0x%x" % k_post.DND0); a("v_add_u32 v4, s13, v3"); a("global_store_dwordx4 v4, v[100:103], s[4:5] sc1")
        a.label(sk2)
        sk3 = a.uid("Lz3")
        a("s_cmp_ge_u32 s60, 8"); a("s_cbranch_scc1 " + sk3)
        a("s_lshl_b32 s12, s60, 7"); a("s_add_u32 s13, s12, 0x%x" % FL('PROG')); a("v_add_u32 v4, s13, v3"); a("global_store_dwordx4 v4, v[100:103], s[4:5] sc1")
        a.label(sk3)
        a("s_mov_b64 exec, -1")
        a.label(sk)
        a("s_lshr_b32 s13, s60, 4"); a("s_lshl_b32 s13, s13, 2"); a("s_add_u32 s13, s13, %d" % DB_LND)
        k_post.signal(a, "s13", base="s[6:7]")
        a("s_branch " + ltop)
        a.label(ldone)
    a("s_mov_b32 s69, 0")
    a.label(top)
    a("s_lshl_b32 s77, s68, 2"); a("s_add_u32 s77, s77, %d" % DB_XQ)
    fetch("s77", "s60")
    a("s_cmp_lt_u32 s68, 5"); a("s_cselect_b32 s78, 14, 13")
    a("s_mov_b32 s79, 0x%x" % ((2**32 + 12) // 13)); a("s_cselect_b32 s79, 0x%x, s79" % ((2**32 + 13) // 14))
    a("s_lshl_b32 s77, s78, 4")
    nq = a.uid("Lnq")
    a("s_cmp_lt_u32 s60, s77"); a("s_cbranch_scc1 " + nq)
    a("s_add_u32 s68, s68, 1"); a("s_cmp_eq_u32 s68, 7"); a("s_cselect_b32 s68, 0, s68")
    a("s_add_u32 s69, s69, 1"); a("s_cmp_lt_u32 s69, 7"); a("s_cbranch_scc1 " + top)
    a("s_branch " + roles)
    a.label(nq)
    if prof:
        a("s_memrealtime s[80:81]"); a("s_waitcnt lgkmcnt(0)")
    a("s_mul_hi_u32 s12, s60, s79")
    a("s_mul_i32 s13, s12, s78"); a("s_sub_u32 s13, s60, s13")
    a("s_mul_i32 s13, s13, 7"); a("s_add_u32 s13, s13, s68")
    a("s_mul_i32 s60, s12, 96"); a("s_add_u32 s60, s60, s13")
    if thr:
        ok2 = a.uid("Lth")
        a("s_cmp_lt_u32 s12, %d" % thr); a("s_cbranch_scc1 " + ok2)
        a("s_cmp_lg_u32 s57, 0"); a("s_cbranch_scc1 " + ok2)
        def wl(f):
            lp = a.uid("Lwp"); dn = a.uid("Lwd")
            a("v_mov_b32 v20, %d" % DB_WL)
            a.label(lp)
            a("global_load_dword v21, v20, s[6:7] sc1"); a("s_waitcnt vmcnt(0)")
            a("v_readfirstlane_b32 s62, v21"); a("s_nop 3")
            a("s_cmp_ge_u32 s62, 32"); a("s_cbranch_scc1 " + dn)
            a("s_sleep 32")
            a("s_sub_u32 s63, s63, 1"); a("s_cbranch_scc0 " + lp)
            a("s_branch " + f)
            a.label(dn)
        k_post.wait_deps(a, [wl], end)
        a("s_mov_b32 s57, 1")
        a.label(ok2)
    if single:
        ok = a.uid("Llr")
        a("s_cmp_lt_u32 s12, s59"); a("s_cbranch_scc1 " + ok)
        def lnpoll(f):
            lp = a.uid("Llp"); done = a.uid("Lld")
            a.label(lp)
            a("v_lshlrev_b32 v20, 2, v2")
            a("s_mov_b64 exec, 0xffff")
            a("global_load_dword v21, v20, s[6:7] offset:%d sc1" % DB_LND)
            a("s_waitcnt vmcnt(0)")
            a("v_cmp_le_u32 vcc, 16, v21")
            a("s_mov_b64 exec, -1")
            a("s_nop 3")
            a("s_or_b32 s62, vcc_lo, 0xffff0000"); a("s_not_b32 s62, s62"); a("s_ff1_i32_b32 s62, s62")
            a("s_cmp_eq_u32 s62, -1"); a("s_cselect_b32 s62, 16, s62")
            a("s_cmp_lt_u32 s12, s62"); a("s_cbranch_scc1 " + done)
            a("s_sleep 8")
            a("s_sub_u32 s63, s63, 1"); a("s_cbranch_scc0 " + lp)
            a("s_branch " + f)
            a.label(done)
            a("v_mov_b32 v20, %d" % (k_post.CTRL + 48)); a("v_mov_b32 v21, s62"); a("ds_write_b32 v20, v21")
            a("buffer_inv sc1")
            a("s_waitcnt vmcnt(0) lgkmcnt(0)")
        k_post.wait_deps(a, [lnpoll], end)
        a("v_mov_b32 v20, %d" % (k_post.CTRL + 48)); a("ds_read_b32 v21, v20"); a("s_waitcnt lgkmcnt(0)")
        a("v_readfirstlane_b32 s59, v21"); a("s_nop 3")
        a.label(ok)
    a("s_lshl_b32 s66, s12, 2"); a("s_add_u32 s65, s66, %d" % DB_KVQ)
    a("s_mov_b32 s58, 0x10000"); a("s_cmp_lt_u32 s13, 64"); a("s_cselect_b32 s58, 1, s58")
    if single != 1:
        nz = a.uid("Lnz"); zl = a.uid("Lzl")
        a("s_cmp_lg_u32 s13, 64"); a("s_cbranch_scc1 " + nz)
        for i in range(4): a("v_mov_b32 v%d, 0" % (24 + i))
        a("s_mul_i32 s14, s12, %d" % (128 * 2560)); a("s_mul_i32 s15, s10, %d" % (32 * 2560)); a("s_add_u32 s14, s14, s15")
        add64(a, 16, 4, "0x%x" % WS['HACC']); add64(a, 16, 16, "s14")
        a("v_lshlrev_b32 v20, 4, v2")
        a("s_mov_b32 s14, 0")
        a.label(zl)
        for i in range(4): a("global_store_dwordx4 v20, v[24:27], s[16:17] offset:%d sc1" % (i * 1024))
        a("s_add_u32 s16, s16, 4096"); a("s_addc_u32 s17, s17, 0")
        a("s_add_u32 s14, s14, 1"); a("s_cmp_lt_u32 s14, 20"); a("s_cbranch_scc1 " + zl)
        a.label(nz)
    task_qkv(a)
    k_post.signal(a, "s65", base="s[6:7]", inc="s58")
    if prof:
        sk = a.uid("Lpf")
        a("s_cmp_lg_u32 s10, 0"); a("s_cbranch_scc1 " + sk)
        a("s_memrealtime s[84:85]"); a("s_waitcnt lgkmcnt(0)")
        a("s_lshl_b32 s76, s60, 4"); a("s_add_u32 s76, s76, %d" % (WS['MEMOUT'] + 4096))
        a("s_mov_b64 exec, 1")
        a("v_mov_b32 v20, s76"); a("v_mov_b32 v24, s80"); a("v_mov_b32 v25, s80"); a("v_mov_b32 v26, s84"); a("v_mov_b32 v27, s3")
        a("global_store_dwordx4 v20, v[24:27], s[4:5]")
        a("s_mov_b64 exec, -1")
        a.label(sk)
    a("s_branch " + top)
    a.label(roles)
    fetch(DB_RT, "s61")
    def mkprof(kind):
        if not prof: return None
        def f(i):
            if i < 2:
                a("s_memrealtime s[%d:%d]" % (80 + 2 * i, 81 + 2 * i)); a("s_waitcnt lgkmcnt(0)")
            else:
                sk = a.uid("Lpf")
                a("s_cmp_lg_u32 s10, 0"); a("s_cbranch_scc1 " + sk)
                a("s_memrealtime s[84:85]"); a("s_waitcnt lgkmcnt(0)")
                a("s_lshl_b32 s76, s61, 6"); a("s_add_u32 s76, s76, s12"); a("s_lshl_b32 s76, s76, 4"); a("s_add_u32 s76, s76, %d" % (WS['MEMOUT'] + 65536))
                a("s_mov_b64 exec, 1")
                a("v_mov_b32 v20, s76"); a("v_mov_b32 v24, s80"); a("v_mov_b32 v25, s82"); a("v_mov_b32 v26, s84"); a("v_mov_b32 v27, %d" % kind)
                a("global_store_dwordx4 v20, v[24:27], s[4:5]")
                a("s_mov_b64 exec, -1")
                a.label(sk)
        return f
    L = {k: a.uid("Lr" + k) for k in ('at', 'wo', 'gu', 'dn', 'ln')}
    a("s_cmp_lt_u32 s61, %d" % N_AT); a("s_cbranch_scc1 " + L['at'])
    a("s_sub_u32 s64, s61, %d" % N_AT); a("s_cmp_lt_u32 s64, %d" % N_WO); a("s_cbranch_scc1 " + L['wo'])
    a("s_sub_u32 s64, s64, %d" % N_WO); a("s_cmp_lt_u32 s64, %d" % N_LN); a("s_cbranch_scc1 " + L['ln'])
    a("s_sub_u32 s64, s64, %d" % N_LN); a("s_cmp_lt_u32 s64, %d" % N_GU); a("s_cbranch_scc1 " + L['gu'])
    a("s_sub_u32 s64, s64, %d" % N_GU); a("s_cmp_lt_u32 s64, %d" % N_DN); a("s_cbranch_scc1 " + L['dn'])
    a("s_branch " + end)
    a.label(L['at'])
    a("s_and_b32 s70, s61, 7"); a("s_lshr_b32 s71, s61, 3")
    k_post.role_attn(a, end, mkprof(1))
    a("s_branch " + roles)
    a.label(L['wo'])
    sdiv(a, 71, 66, 64, 40); a("s_and_b32 s70, s66, 7"); a("s_lshr_b32 s72, s66, 3")
    k_post.role_wo(a, end, mkprof(2))
    a("s_branch " + roles)
    a.label(L['ln'])
    a("s_and_b32 s70, s64, 3"); a("s_lshr_b32 s71, s64, 2")
    k_post.role_ln(a, end, mkprof(5))
    a("s_branch " + roles)
    a.label(L['gu'])
    sdiv(a, 71, 70, 64, 27)
    k_post.role_gu(a, end, mkprof(3))
    a("s_branch " + roles)
    a.label(L['dn'])
    sdiv(a, 71, 66, 64, 15); sdiv(a, 70, 72, 66, 5)
    k_post.role_dn(a, end, mkprof(4))
    a("s_branch " + roles)

def ln_phase(a):
    import k_post
    load_ptr(a, 40, 'x')
    a("v_and_b32 v2, 63, v0")
    a("v_lshlrev_b32 v3, 4, v2")
    for i in range(4): a("v_mov_b32 v%d, 0" % (50 + i))
    a("s_waitcnt lgkmcnt(0)")
    a("s_lshl_b32 s11, s2, 3"); a("s_lshl_b32 s12, s10, 1"); a("s_add_u32 s11, s11, s12")
    for j in range(2):
        a("s_add_u32 s13, s11, %d" % j)
        a("s_mul_i32 s12, s13, 1280")
        add64(a, 16, 40, "s12"); add64(a, 18, 4, "0x%x" % WS['XN']); add64(a, 18, 18, "s12")
        n0 = len(a.lines)
        ln_row(a, 16, 18, 3)
        for i in range(n0, len(a.lines)):
            if a.lines[i].strip().startswith("global_store"): a.lines[i] += " sc1"
    for j in range(2):
        a("s_add_u32 s13, s11, %d" % j)
        a("s_mul_i32 s12, s13, 2560")
        add64(a, 14, 4, "0x%x" % WS['HACC']); add64(a, 14, 14, "s12")
        a("global_store_dwordx4 v3, v[50:53], s[14:15] sc1"); a("global_store_dwordx4 v3, v[50:53], s[14:15] offset:1024 sc1")
        a("s_mov_b32 exec_hi, 0"); a("global_store_dwordx4 v3, v[50:53], s[14:15] offset:2048 sc1"); a("s_mov_b32 exec_hi, -1")
    sk = a.uid("Lz")
    a("s_cmp_lg_u32 s10, 0"); a("s_cbranch_scc1 " + sk)
    a("s_mov_b64 exec, 0xff")
    sk2 = a.uid("Lz2")
    a("s_and_b32 s12, s2, 3"); a("s_cmp_lg_u32 s12, 0"); a("s_cbranch_scc1 " + sk2)
    a("s_lshl_b32 s12, s2, 5")
    a("s_add_u32 s13, s12, 0x%x" % k_post.SEGF0); a("v_add_u32 v4, s13, v3"); a("global_store_dwordx4 v4, v[50:53], s[4:5] sc1")
    a("s_add_u32 s13, s12, 0x%x" % k_post.DND0); a("v_add_u32 v4, s13, v3"); a("global_store_dwordx4 v4, v[50:53], s[4:5] sc1")
    a.label(sk2)
    sk3 = a.uid("Lz3")
    a("s_cmp_ge_u32 s2, 8"); a("s_cbranch_scc1 " + sk3)
    a("s_lshl_b32 s12, s2, 7"); a("s_add_u32 s13, s12, 0x%x" % FL('PROG')); a("v_add_u32 v4, s13, v3"); a("global_store_dwordx4 v4, v[50:53], s[4:5] sc1")
    a.label(sk3)
    a("s_mov_b64 exec, -1")
    a.label(sk)
    a("s_lshr_b32 s13, s2, 4"); a("s_lshl_b32 s13, s13, 2"); a("s_add_u32 s13, s13, %d" % DB_LND)
    k_post.signal(a, "s13", base="s[6:7]")

def gen_mega(a, name, **kw):
    kernel_header(a, name)
    end = a.uid("Lend"); wk = a.uid("Lworker")
    endfar = a.uid("Lendf")
    a("s_cmp_ge_u32 s2, 256"); a("s_cbranch_scc1 " + endfar)
    load_ptr(a, 4, 'ws'); load_ptr(a, 6, 'dbg')
    a("s_getreg_b32 s3, hwreg(HW_REG_XCC_ID)")
    a("s_and_b32 s3, s3, 15")
    a("v_lshrrev_b32 v3, 6, v0")
    a("s_nop 0")
    a("v_readfirstlane_b32 s10, v3")
    a("s_waitcnt lgkmcnt(0)")
    single = kw.pop('single', 0); thr = kw.pop('thr', 0); codepf = kw.pop('codepf', 0)
    if codepf:
        sk = a.uid("Lpf")
        a("s_cmp_eq_u32 s10, 0"); a("s_cbranch_scc1 " + sk)
        a("s_getpc_b64 s[16:17]")
        a("v_and_b32 v10, 63, v0"); a("v_lshlrev_b32 v10, 7, v10")
        a("s_sub_u32 s18, s10, 1"); a("s_lshl_b32 s18, s18, 14"); a("v_add_u32 v10, s18, v10")
        a("global_load_dword v11, v10, s[16:17]")
        a("s_cmp_eq_u32 s10, 3"); a("s_cbranch_scc1 " + sk)
        a("v_add_u32 v10, 0x2000, v10")
        a("global_load_dword v12, v10, s[16:17]")
        a.label(sk)
    if single == 1: ln_phase(a)
    k_chain.role_election(a, end)
    a("s_cmp_ge_u32 s11, 32")
    ch = a.uid("Lchain")
    a("s_cbranch_scc0 " + ch)
    worker(a, endfar, kw.get('prof', 0), single, thr)
    a.label(endfar)
    a("s_endpgm")
    a.label(ch)
    k_chain.chain_body(a, end, merged=True, **kw)
    a.label(end)
    a("s_endpgm")
    return kernel_desc(name, 512, 102, 256)
```

```python
from asmlib import *
from k_gemm import add64, load_ptr, sdiv
from k_attn import C_SCALE, xmax_groups
from k_ln import wave_sum

SC = " sc1"
CTRL = 159744
SEGF0 = WS['FLAGS'] + 0x8000
DND0 = WS['FLAGS'] + 0x10000
DPART = 0x8000000
G_AT, G_WO, G_GU, G_DN, G_LN = 4, 2, 2, 3, 3
N_AT, N_WO, N_GU, N_DN, N_LN = 8 * G_AT, 40 * G_WO, 27 * G_GU, 15 * G_DN, 4 * G_LN

def poll(a, off_s, target, fail, base="s[4:5]"):
    lp = a.uid("Lq"); ok = a.uid("Lqo")
    a("v_mov_b32 v20, %s" % off_s)
    a.label(lp)
    a("global_load_dword v21, v20, %s sc1" % base)
    a("s_waitcnt vmcnt(0)")
    a("v_readfirstlane_b32 s62, v21")
    a("s_nop 3")
    a("s_cmp_ge_u32 s62, %s" % target); a("s_cbranch_scc1 " + ok)
    a("s_sleep 2")
    a("s_sub_u32 s63, s63, 1"); a("s_cbranch_scc0 " + lp)
    a("s_branch " + fail)
    a.label(ok)

def poll4(a, off_s, target, fail):
    lp = a.uid("Lq"); ok = a.uid("Lqo")
    a("v_mov_b32 v20, %s" % off_s)
    a.label(lp)
    a("global_load_dwordx4 v[24:27], v20, s[4:5] sc1")
    a("s_waitcnt vmcnt(0)")
    a("v_min_u32 v21, v24, v25"); a("v_min_u32 v22, v26, v27"); a("v_min_u32 v21, v21, v22")
    a("s_nop 0")
    a("v_readfirstlane_b32 s62, v21")
    a("s_nop 3")
    a("s_cmp_ge_u32 s62, %s" % target); a("s_cbranch_scc1 " + ok)
    a("s_sleep 2")
    a("s_sub_u32 s63, s63, 1"); a("s_cbranch_scc0 " + lp)
    a("s_branch " + fail)
    a.label(ok)

def wait_deps(a, polls, end):
    sk = a.uid("Ldw"); fl = a.uid("Ldf"); wr = a.uid("Ldr")
    a("s_cmp_lg_u32 s10, 0"); a("s_cbranch_scc1 " + sk)
    for p in polls: p(fl)
    a("v_mov_b32 v21, 0")
    a("s_branch " + wr)
    a.label(fl)
    a("v_mov_b32 v21, 1")
    a.label(wr)
    a("v_mov_b32 v20, %d" % (CTRL + 16))
    a("ds_write_b32 v20, v21")
    a("s_waitcnt lgkmcnt(0)")
    a.label(sk)
    a("s_barrier")
    a("v_mov_b32 v20, %d" % (CTRL + 16))
    a("ds_read_b32 v21, v20")
    a("s_waitcnt lgkmcnt(0)")
    a("v_readfirstlane_b32 s62, v21")
    a("s_nop 3")
    a("s_cmp_lg_u32 s62, 0"); a("s_cbranch_scc1 " + end)

def signal(a, off_s, ret_sreg=None, base="s[4:5]", inc="1"):
    a("s_waitcnt vmcnt(0)")
    a("s_barrier")
    sk = a.uid("Lsg")
    a("s_cmp_lg_u32 s10, 0"); a("s_cbranch_scc1 " + sk)
    a("s_mov_b64 exec, 1")
    a("v_mov_b32 v20, %s" % off_s); a("v_mov_b32 v21, %s" % inc)
    if ret_sreg is None:
        a("global_atomic_add v20, v21, %s" % base)
    else:
        a("global_atomic_add v22, v20, v21, %s sc0" % base)
        a("s_waitcnt vmcnt(0)")
        a("v_mov_b32 v20, %d" % (CTRL + 32))
        a("ds_write_b32 v20, v22")
        a("s_waitcnt lgkmcnt(0)")
    a("s_mov_b64 exec, -1")
    a.label(sk)
    if ret_sreg is not None:
        a("s_barrier")
        a("v_mov_b32 v20, %d" % (CTRL + 32))
        a("ds_read_b32 v22, v20")
        a("s_waitcnt lgkmcnt(0)")
        a("v_readfirstlane_b32 %s, v22" % ret_sreg)
        a("s_nop 3")

def role_attn(a, end, prof=None):
    a("s_lshl_b32 s13, s70, 2"); a("s_add_u32 s13, s13, s10")
    a("s_mov_b32 s12, s71")
    a("v_lshlrev_b32 v3, 4, v2"); a("v_add_u32 v4, 4096, v3"); a("v_lshlrev_b32 v5, 3, v2")
    a("s_mov_b32 s16, 0x%x" % C_SCALE)
    top = a.uid("Lat")
    a.label(top)
    if prof: prof(0)
    a("s_lshr_b32 s30, s12, 2"); a("s_lshl_b32 s30, s30, 2")
    a("s_add_u32 s31, s30, %d" % DB_KVQ); a("s_mov_b32 s32, 0x200040")
    wait_deps(a, [lambda f: poll(a, "s31", "s32", f, "s[6:7]")], end)
    a("s_lshl_b32 s14, s12, 5"); a("s_add_u32 s14, s14, s13")
    a("s_lshl_b32 s15, s14, 13")
    add64(a, 20, 4, "0x%x" % WS['Q']); add64(a, 20, 20, "s15")
    add64(a, 22, 4, "0x%x" % WS['K']); add64(a, 22, 22, "s15")
    add64(a, 24, 4, "0x%x" % WS['V']); add64(a, 24, 24, "s15")
    a("s_lshl_b32 s15, s14, 12"); add64(a, 26, 4, "0x%x" % WS['KM']); add64(a, 26, 26, "s15")
    a("s_lshl_b32 s15, s14, 11"); add64(a, 28, 4, "0x%x" % WS['VM']); add64(a, 28, 28, "s15")
    for qt in range(2):
        for st in range(4):
            a("global_load_dwordx4 v[%d:%d], v%d, s[20:21] offset:%d%s" % (32 + qt * 16 + st * 4, 35 + qt * 16 + st * 4, 3 + qt, st * 1024, SC))
    for kt in range(2):
        for st in range(4):
            a("global_load_dwordx4 v[%d:%d], v%d, s[22:23] offset:%d%s" % (64 + kt * 16 + st * 4, 67 + kt * 16 + st * 4, 3 + kt, st * 1024, SC))
    for et in range(8):
        a("global_load_dwordx4 v[%d:%d], v%d, s[24:25] offset:%d%s" % (192 + et * 4, 195 + et * 4, 3 + et // 4, (et % 4) * 1024, SC))
    QF = lambda qt, st: 32 + qt * 16 + st * 4
    SCR = lambda kt, qt: 112 + (kt * 2 + qt) * 4
    a("s_waitcnt vmcnt(8)")
    for st in range(4):
        for qt in range(2):
            for kt in (1, 2):
                if kt == 2 and qt == 0: continue
                ab = 64 + (kt - 1) * 16 + st * 4; d = SCR(kt, qt); q = QF(qt, st)
                c_ = "0" if st == 0 else "v[%d:%d]" % (d, d + 3)
                a("v_mfma_f32_16x16x32_bf16 v[%d:%d], v[%d:%d], v[%d:%d], %s" % (d, d + 3, ab, ab + 3, q, q + 3, c_))
    a("v_lshrrev_b32 v6, 4, v2"); a("v_lshlrev_b32 v6, 2, v6")
    a("v_and_b32 v7, 15, v2")
    a("v_mov_b32 v8, 0xff800000")
    a("s_nop 7")
    for r in range(4):
        a("v_add_u32 v9, %d, v6" % r)
        a("v_cmp_gt_u32 vcc, v9, v7")
        a("s_nop 1")
        a("v_cndmask_b32 v%d, v%d, v8, vcc" % (SCR(1, 0) + r, SCR(1, 0) + r))
        a("v_cndmask_b32 v%d, v%d, v8, vcc" % (SCR(2, 1) + r, SCR(2, 1) + r))
    a("s_lshl_b32 s31, s70, 7"); a("s_add_u32 s31, s31, 0x%x" % FL('PROG')); a("s_add_u32 s32, s12, 1")
    wait_deps(a, [lambda f: poll4(a, "s31", "s32", f)], end)
    if prof: prof(1)
    for st in range(4):
        a("global_load_dwordx4 v[%d:%d], v3, s[26:27] offset:%d%s" % (96 + st * 4, 99 + st * 4, st * 1024, SC))
    for w in range(4):
        a("global_load_dwordx2 v[%d:%d], v5, s[28:29] offset:%d%s" % (224 + w * 2, 225 + w * 2, w * 512, SC))
    a("s_waitcnt vmcnt(4)")
    for st in range(4):
        for qt in range(2):
            d = SCR(0, qt); q = QF(qt, st); ab = 96 + st * 4
            c_ = "0" if st == 0 else "v[%d:%d]" % (d, d + 3)
            a("v_mfma_f32_16x16x32_bf16 v[%d:%d], v[%d:%d], v[%d:%d], %s" % (d, d + 3, ab, ab + 3, q, q + 3, c_))
    for i in range(4): a("v_mov_b32 v%d, 0x3f803f80" % (12 + i))
    a("s_nop 4")
    for qt in range(2):
        tiles = [0, 1] if qt == 0 else [0, 1, 2]
        regs = [SCR(kt, qt) + r for kt in tiles for r in range(4)]
        a("v_max3_f32 v10, v%d, v%d, v%d" % tuple(regs[0:3]))
        rr = regs[3:]
        while rr:
            if len(rr) >= 2: a("v_max3_f32 v10, v10, v%d, v%d" % (rr[0], rr[1])); rr = rr[2:]
            else: a("v_max_f32 v10, v10, v%d" % rr[0]); rr = rr[1:]
        xmax_groups(a, 10, 11)
        a("v_mul_f32 v10, s16, v10")
        for r in regs: a("v_fma_f32 v%d, v%d, s16, -v10" % (r, r))
        for r in regs: a("v_exp_f32 v%d, v%d" % (r, r))
        a("s_nop 0")
        pb = 64 + qt * 8
        s1 = SCR(1, qt)
        a("v_cvt_pk_bf16_f32 v%d, v%d, v%d" % (pb, s1, s1 + 1)); a("v_cvt_pk_bf16_f32 v%d, v%d, v%d" % (pb + 1, s1 + 2, s1 + 3))
        if qt == 1:
            s2 = SCR(2, qt)
            a("v_cvt_pk_bf16_f32 v%d, v%d, v%d" % (pb + 2, s2, s2 + 1)); a("v_cvt_pk_bf16_f32 v%d, v%d, v%d" % (pb + 3, s2 + 2, s2 + 3))
        else:
            a("v_mov_b32 v%d, 0" % (pb + 2)); a("v_mov_b32 v%d, 0" % (pb + 3))
        s0 = SCR(0, qt)
        a("v_cvt_pk_bf16_f32 v10, v%d, v%d" % (s0, s0 + 1)); a("v_cvt_pk_bf16_f32 v11, v%d, v%d" % (s0 + 2, s0 + 3))
        a("v_cndmask_b32_e64 v%d, 0, v10, s[96:97]" % (pb + 4)); a("v_cndmask_b32_e64 v%d, 0, v11, s[96:97]" % (pb + 5))
        a("v_cndmask_b32_e64 v%d, v10, 0, s[96:97]" % (pb + 6)); a("v_cndmask_b32_e64 v%d, v11, 0, s[96:97]" % (pb + 7))
    a("s_waitcnt vmcnt(0)")
    OA = lambda qt, et: 128 + (qt * 8 + et) * 4
    for qt in range(2):
        pb = 64 + qt * 8; d = 16 + qt * 4
        a("v_mfma_f32_16x16x32_bf16 v[%d:%d], v[12:15], v[%d:%d], 0" % (d, d + 3, pb, pb + 3))
        for et in range(8):
            d = OA(qt, et)
            a("v_mfma_f32_16x16x32_bf16 v[%d:%d], v[%d:%d], v[%d:%d], 0" % (d, d + 3, 192 + et * 4, 195 + et * 4, pb, pb + 3))
    a("s_nop 3")
    for qt in range(2):
        pb = 64 + qt * 8; d = 16 + qt * 4
        a("v_mfma_f32_16x16x16_bf16 v[%d:%d], v[12:13], v[%d:%d], v[%d:%d]" % (d, d + 3, pb + 4, pb + 5, d, d + 3))
        for et in range(8):
            d = OA(qt, et); pm = pb + 4 + 2 * (et % 2); vmr = 224 + (et // 2) * 2
            a("v_mfma_f32_16x16x16_bf16 v[%d:%d], v[%d:%d], v[%d:%d], v[%d:%d]" % (d, d + 3, vmr, vmr + 1, pm, pm + 1, d, d + 3))
    add64(a, 30, 4, "0x%x" % WS['O'])
    a("s_lshl_b32 s15, s12, 18"); a("s_lshl_b32 s17, s13, 8"); a("s_add_u32 s15, s15, s17")
    add64(a, 30, 30, "s15")
    a("v_lshlrev_b32 v9, 13, v7")
    a("v_bfe_u32 v10, v2, 4, 1"); a("v_lshlrev_b32 v10, 5, v10"); a("v_add_u32 v9, v9, v10")
    a("v_lshrrev_b32 v10, 5, v2"); a("v_lshlrev_b32 v10, 4, v10"); a("v_add_u32 v9, v9, v10")
    for qt in range(2):
        a("v_rcp_f32 v10, v%d" % (16 + qt * 4))
        a("s_nop 0")
        if qt == 1: a("v_add_u32 v9, %d, v9" % (16 * 8192))
        for ep in range(4):
            d0 = OA(qt, 2 * ep); d1 = OA(qt, 2 * ep + 1)
            for d in (d0, d1):
                a("v_pk_mul_f32 v[%d:%d], v[%d:%d], v[10:11] op_sel_hi:[1,0]" % (d, d + 1, d, d + 1))
                a("v_pk_mul_f32 v[%d:%d], v[%d:%d], v[10:11] op_sel_hi:[1,0]" % (d + 2, d + 3, d + 2, d + 3))
            a("v_cvt_pk_bf16_f32 v%d, v%d, v%d" % (d0, d0, d0 + 1)); a("v_cvt_pk_bf16_f32 v%d, v%d, v%d" % (d0 + 1, d0 + 2, d0 + 3))
            a("v_cvt_pk_bf16_f32 v%d, v%d, v%d" % (d0 + 2, d1, d1 + 1)); a("v_cvt_pk_bf16_f32 v%d, v%d, v%d" % (d0 + 3, d1 + 2, d1 + 3))
            a("s_nop 1")
            a("v_permlane16_swap_b32 v%d, v%d" % (d0, d0 + 2)); a("v_permlane16_swap_b32 v%d, v%d" % (d0 + 1, d0 + 3))
            a("global_store_dwordx4 v9, v[%d:%d], s[30:31] offset:%d%s" % (d0, d0 + 3, ep * 64, SC))
    a("s_lshl_b32 s31, s12, 7"); a("s_add_u32 s31, s31, 0x%x" % SEGF0)
    signal(a, "s31")
    if prof: prof(2)
    a("s_add_u32 s12, s12, %d" % G_AT); a("s_cmp_lt_u32 s12, 64"); a("s_cbranch_scc1 " + top)

def load_B(a, K, sB0, sB1, ldb, gu):
    a("v_lshrrev_b32 v12, 3, v2"); a("v_and_b32 v13, 7, v2")
    a("v_bfe_u32 v14, v12, 1, 1"); a("v_lshlrev_b32 v14, 2, v14"); a("v_xor_b32 v14, v13, v14"); a("v_lshlrev_b32 v14, 4, v14")
    a("s_and_b32 s20, s10, 1"); a("s_lshl_b32 s20, s20, 5")
    a("v_add_u32 v15, s20, v12"); a("s_mov_b32 s21, %d" % ldb); a("v_mul_lo_u32 v15, v15, s21")
    a("v_add_u32 v8, v15, v14")
    for i in range(1, 4): a("v_add_u32 v%d, %d, v8" % (8 + i, 8 * i * ldb))
    a("s_cmp_ge_u32 s10, 2")
    a("s_cselect_b32 s22, %s, %s" % (S(sB1), S(sB0))); a("s_cselect_b32 s23, %s, %s" % (S(sB1 + 1), S(sB0 + 1)))
    a("s_lshl_b32 s26, s10, 12")
    a("v_bfe_u32 v12, v2, 4, 1"); a("v_lshrrev_b32 v13, 5, v2"); a("v_bfe_u32 v14, v2, 2, 2"); a("v_and_b32 v15, 3, v2")
    a("v_lshlrev_b32 v20, 3, v13"); a("v_add_u32 v20, v20, v14"); a("v_lshlrev_b32 v20, 7, v20")
    a("v_lshrrev_b32 v22, 1, v15")
    if gu:
        a("s_lshl_b32 s20, s10, 1"); a("v_add_u32 v21, s20, v22")
        a("v_lshlrev_b32 v23, 13, v12"); a("v_add_u32 v20, v20, v23")
    else:
        a("v_lshlrev_b32 v21, 1, v12"); a("v_add_u32 v21, v21, v22")
        a("s_and_b32 s20, s10, 1"); a("s_lshl_b32 s20, s20, 2"); a("v_add_u32 v21, s20, v21")
        a("s_lshr_b32 s20, s10, 1"); a("s_lshl_b32 s20, s20, 13"); a("v_add_u32 v20, s20, v20")
    a("v_lshrrev_b32 v22, 1, v14"); a("v_lshlrev_b32 v22, 2, v22"); a("v_xor_b32 v21, v21, v22"); a("v_lshlrev_b32 v21, 4, v21")
    a("v_and_b32 v22, 1, v15"); a("v_lshlrev_b32 v22, 3, v22")
    a("v_add3_u32 v20, v20, v21, v22")
    nb = K // 64
    def issue(b):
        base = (b % 4) * 16384
        for i in range(4):
            a("s_add_u32 m0, s26, %d" % (base + i * 1024)); a("s_nop 0")
            a("global_load_lds_dwordx4 v%d, s[22:23]" % (8 + i))
        a("s_add_u32 s22, s22, %d" % (64 * ldb)); a("s_addc_u32 s23, s23, 0")
    for b in range(min(3, nb)): issue(b)
    for b in range(nb):
        rem = min(nb - 1, b + 2) - b
        a("s_waitcnt vmcnt(%d)" % (4 * rem))
        a("s_barrier")
        if b + 3 < nb: issue(b + 3)
        base = (b % 4) * 16384
        for ks in range(4):
            for i in range(2):
                d = 256 + (b * 4 + ks) * 4 + 2 * i
                a("ds_read_b64_tr_b16 %s, v20 offset:%d" % (R(d, 2), base + ks * 2048 + i * 512))
        a("s_waitcnt lgkmcnt(0)")
    a("s_barrier")

def a_dma_setup(a, K, lda):
    CPR = K // 8
    n = CPR // 2
    per = (n + 3) // 4
    magic = (2**32 + CPR - 1) // CPR
    a("s_mov_b32 s20, 0x%x" % magic); a("s_mov_b32 s21, %d" % lda)
    for i in range(per):
        a("s_lshl_b32 s24, s10, 6"); a("s_add_u32 s24, s24, %d" % (i * 256))
        a("v_add_u32 v12, s24, v2")
        a("v_mul_hi_u32 v13, v12, s20")
        a("v_mul_u32_u24 v14, %d, v13" % CPR); a("v_sub_u32 v14, v12, v14")
        a("v_and_b32 v15, 7, v13"); a("v_xor_b32 v14, v14, v15"); a("v_lshlrev_b32 v14, 4, v14")
        a("v_mul_lo_u32 v13, v13, s21")
        a("v_add_u32 v%d, v13, v14" % (40 + i))
    a("v_and_b32 v12, 31, v2"); a("v_mul_u32_u24 v12, %d, v12" % (2 * K))
    a("v_lshrrev_b32 v13, 5, v2"); a("v_and_b32 v14, 7, v2"); a("v_xor_b32 v13, v13, v14"); a("v_lshlrev_b32 v13, 4, v13")
    a("v_add_u32 v52, v12, v13")
    for q in range(1, 4): a("v_xor_b32 v%d, %d, v52" % (52 + q, q * 32))
    return n, per

def a_dma(a, n, per, sA):
    for i in range(per):
        sk = None
        if (i + 1) * 4 > n:
            sk = a.uid("Lsk"); a("s_cmp_ge_u32 s10, %d" % (n - i * 4)); a("s_cbranch_scc1 " + sk)
        a("s_lshl_b32 s24, s10, 10"); a("s_add_u32 m0, s24, %d" % (i * 4096)); a("s_nop 0")
        a("global_load_lds_dwordx4 v%d, %s%s" % (40 + i, S(sA, 2), SC))
        if sk: a.label(sk)
    a("s_waitcnt vmcnt(0)")
    a("s_barrier")

def sg_mfma(a, K, swap):
    nks = K // 16
    def rd(ks): a("ds_read_b128 v[%d:%d], v%d offset:%d" % (80 + 4 * (ks % 4), 83 + 4 * (ks % 4), 52 + (ks % 4), (ks // 4) * 128))
    for ks in range(min(4, nks)): rd(ks)
    for ks in range(nks):
        rem = min(nks - 1, ks + 3) - ks
        a("s_waitcnt lgkmcnt(%d)" % rem)
        A_ = "v[%d:%d]" % (80 + 4 * (ks % 4), 83 + 4 * (ks % 4)); B_ = R(256 + 4 * ks, 4)
        if swap: A_, B_ = B_, A_
        c_ = "0" if ks == 0 else "v[64:79]"
        a("v_mfma_f32_32x32x16_bf16 v[64:79], %s, %s, %s" % (A_, B_, c_))
        if ks + 4 < nks: rd(ks + 4)
    a("s_nop 15")

def ln2_rows(a):
    load_ptr(a, 40, 'x')
    a("v_lshrrev_b32 v12, 4, v2"); a("v_and_b32 v13, 15, v2")
    a("s_lshl_b32 s20, s12, 5"); a("s_lshl_b32 s21, s10, 3"); a("s_add_u32 s20, s20, s21")
    a("v_add_u32 v12, s20, v12")
    a("s_mov_b32 s21, 2560"); a("v_mul_lo_u32 v14, v12, s21"); a("v_lshlrev_b32 v15, 5, v13"); a("v_add_u32 v14, v14, v15")
    a("s_mov_b32 s21, 1280"); a("v_mul_lo_u32 v16, v12, s21"); a("v_lshlrev_b32 v15, 4, v13"); a("v_add_u32 v16, v16, v15")
    add64(a, 42, 4, "0x%x" % WS['HACC']); add64(a, 44, 4, "0x%x" % WS['H']); add64(a, 46, 4, "0x%x" % WS['HN'])
    a("s_waitcnt lgkmcnt(0)")
    for p in range(2):
        b = 96 + 60 * p
        if p == 1:
            a("v_add_u32 v17, %d, v14" % (4 * 2560)); a("v_add_u32 v18, %d, v16" % (4 * 1280))
        va, vx = (14, 16) if p == 0 else (17, 18)
        for c in range(5):
            a("global_load_dwordx4 v[%d:%d], v%d, s[42:43] offset:%d%s" % (b + 8 * c, b + 8 * c + 3, va, c * 512, SC))
            a("global_load_dwordx4 v[%d:%d], v%d, s[42:43] offset:%d%s" % (b + 8 * c + 4, b + 8 * c + 7, va, c * 512 + 16, SC))
            a("global_load_dwordx4 v[%d:%d], v%d, s[40:41] offset:%d" % (b + 40 + 4 * c, b + 43 + 4 * c, vx, c * 256))
    def sum16(t):
        for d in ("quad_perm:[1,0,3,2]", "quad_perm:[2,3,0,1]", "row_half_mirror", "row_mirror"):
            a("s_nop 1")
            a("v_add_f32_dpp v%d, v%d, v%d %s row_mask:0xf bank_mask:0xf" % (t, t, t, d))
    for p in range(2):
        b = 96 + 60 * p
        va, vx = (14, 16) if p == 0 else (17, 18)
        a("s_waitcnt vmcnt(%d)" % (15 if p == 0 else 0))
        if p == 1: a("s_waitcnt vmcnt(0)")
        for i in range(20):
            x = b + 40 + i; f0, f1 = b + 2 * i, b + 2 * i + 1
            a("v_cvt_pk_bf16_f32 v20, v%d, v%d" % (f0, f1))
            a("v_lshlrev_b32 v21, 16, v20"); a("v_and_b32 v22, 0xffff0000, v20")
            a("v_lshlrev_b32 v23, 16, v%d" % x); a("v_and_b32 v24, 0xffff0000, v%d" % x)
            a("v_add_f32 v21, v21, v23"); a("v_add_f32 v22, v22, v24")
            a("v_cvt_pk_bf16_f32 v%d, v21, v22" % x)
            a("v_lshlrev_b32 v%d, 16, v%d" % (f0, x)); a("v_and_b32 v%d, 0xffff0000, v%d" % (f1, x))
        for c in range(5):
            a("global_store_dwordx4 v%d, v[%d:%d], s[44:45] offset:%d%s" % (vx, b + 40 + 4 * c, b + 43 + 4 * c, c * 256, SC))
        a("v_add_f32 v20, v%d, v%d" % (b, b + 1)); a("v_add_f32 v21, v%d, v%d" % (b + 2, b + 3))
        for i in range(4, 40, 2): a("v_add_f32 v20, v20, v%d" % (b + i)); a("v_add_f32 v21, v21, v%d" % (b + i + 1))
        a("v_add_f32 v20, v20, v21")
        sum16(20)
        a("v_mul_f32 v20, 0x3acccccd, v20")
        for i in range(40): a("v_sub_f32 v%d, v%d, v20" % (b + i, b + i))
        a("v_mul_f32 v21, v%d, v%d" % (b, b)); a("v_mul_f32 v22, v%d, v%d" % (b + 1, b + 1))
        for i in range(2, 40, 2): a("v_fmac_f32 v21, v%d, v%d" % (b + i, b + i)); a("v_fmac_f32 v22, v%d, v%d" % (b + i + 1, b + i + 1))
        a("v_add_f32 v21, v21, v22")
        sum16(21)
        a("v_mov_b32 v22, 0x3727c5ac"); a("v_fmac_f32 v22, 0x3acccccd, v21"); a("v_rsq_f32 v22, v22"); a("s_nop 0")
        for i in range(0, 40, 2):
            a("v_pk_mul_f32 v[%d:%d], v[%d:%d], v[22:23] op_sel_hi:[1,0]" % (b + i, b + i + 1, b + i, b + i + 1))
        for i in range(20): a("v_cvt_pk_bf16_f32 v%d, v%d, v%d" % (216 + i, b + 2 * i, b + 2 * i + 1))
        for c in range(5):
            a("global_store_dwordx4 v%d, v[%d:%d], s[46:47] offset:%d%s" % (vx, 216 + 4 * c, 219 + 4 * c, c * 256, SC))
            a("s_nop 0")

def role_wo(a, end, prof=None):
    load_ptr(a, 40, 'Wo'); a("s_waitcnt lgkmcnt(0)")
    a("s_mul_i32 s16, s70, %d" % (512 * 1280)); a("s_lshl_b32 s17, s72, 8"); a("s_add_u32 s16, s16, s17")
    add64(a, 46, 40, "s16"); add64(a, 48, 46, "128")
    load_B(a, 512, 46, 48, 1280, False)
    n, per = a_dma_setup(a, 512, 8192)
    a("v_lshrrev_b32 v12, 5, v2"); a("v_mul_u32_u24 v12, %d, v12" % (4 * 2560)); a("v_and_b32 v13, 31, v2"); a("v_lshlrev_b32 v13, 2, v13")
    a("s_lshl_b32 s20, s72, 9"); a("s_lshl_b32 s21, s10, 7"); a("s_add_u32 s20, s20, s21"); a("v_add3_u32 v56, v12, v13, s20")
    a("s_mov_b32 s12, s71")
    top = a.uid("Lwo"); a.label(top)
    if prof: prof(0)
    a("s_lshl_b32 s31, s12, 7"); a("s_add_u32 s31, s31, 0x%x" % SEGF0)
    wait_deps(a, [lambda f: poll(a, "s31", "8", f)], end)
    if prof: prof(1)
    a("s_lshl_b32 s16, s12, 18"); a("s_lshl_b32 s17, s70, 10"); a("s_add_u32 s16, s16, s17")
    add64(a, 50, 4, "0x%x" % WS['O']); add64(a, 50, 50, "s16")
    a_dma(a, n, per, 50)
    sg_mfma(a, 512, False)
    a("s_mul_i32 s16, s12, %d" % (32 * 2560)); add64(a, 54, 4, "0x%x" % WS['HACC']); add64(a, 54, 54, "s16")
    for r in range(16):
        row = 8 * (r // 4) + (r % 4)
        a("v_add_u32 v12, %d, v56" % (row * 2560))
        a("global_atomic_add_f32 v12, v%d, s[54:55]" % (64 + r))
    a("s_add_u32 s31, s31, 4")
    signal(a, "s31")
    if prof: prof(2)
    a("s_add_u32 s12, s12, %d" % G_WO); a("s_cmp_lt_u32 s12, 64"); a("s_cbranch_scc1 " + top)

def role_gu(a, end, prof=None):
    load_ptr(a, 40, 'Wg'); load_ptr(a, 42, 'Wu'); a("s_waitcnt lgkmcnt(0)")
    a("s_lshl_b32 s16, s70, 7")
    add64(a, 46, 40, "s16"); add64(a, 48, 42, "s16")
    load_B(a, 640, 46, 48, 3456, True)
    n, per = a_dma_setup(a, 640, 1280)
    a("v_and_b32 v12, 31, v2"); a("v_mul_u32_u24 v12, 3456, v12"); a("v_lshrrev_b32 v13, 5, v2"); a("v_lshlrev_b32 v13, 4, v13")
    a("s_lshl_b32 s20, s70, 7"); a("s_lshl_b32 s21, s10, 5"); a("s_add_u32 s20, s20, s21"); a("v_add3_u32 v56, v12, v13, s20")
    sdiv(a, 34, 35, 70, 9)
    a("s_mov_b32 s12, s71")
    top = a.uid("Lgu"); a.label(top)
    if prof: prof(0)
    a("s_lshl_b32 s31, s12, 7"); a("s_add_u32 s31, s31, 0x%x" % (SEGF0 + 8))
    wait_deps(a, [lambda f: poll(a, "s31", "4", f)], end)
    if prof: prof(1)
    a("s_mul_i32 s16, s12, %d" % (32 * 1280)); add64(a, 50, 4, "0x%x" % WS['HN']); add64(a, 50, 50, "s16")
    a_dma(a, n, per, 50)
    sg_mfma(a, 640, True)
    def rb(dst, src):
        a("v_cvt_pk_bf16_f32 v8, v%d, v%d" % (src, src + 1))
        a("v_lshlrev_b32 v%d, 16, v8" % dst); a("v_and_b32 v%d, 0xffff0000, v8" % (dst + 1))
    for q in range(2):
        g = 64 + 4 * q; u = 72 + 4 * q
        for pr in range(2): rb(10 + 2 * pr, g + 2 * pr); rb(14 + 2 * pr, u + 2 * pr)
        for j in range(4): a("v_mul_f32 v%d, 0xbfb8aa3b, v%d" % (20 + j, 10 + j))
        for j in range(4): a("v_exp_f32 v%d, v%d" % (20 + j, 20 + j))
        a("s_nop 0")
        for j in range(4): a("v_add_f32 v%d, 1.0, v%d" % (20 + j, 20 + j))
        for j in range(4): a("v_rcp_f32 v%d, v%d" % (20 + j, 20 + j))
        a("s_nop 0")
        for j in range(4): a("v_mul_f32 v%d, v%d, v%d" % (10 + j, 10 + j, 20 + j))
        rb(10, 10); rb(12, 12)
        for j in range(4): a("v_mul_f32 v%d, v%d, v%d" % (10 + j, 10 + j, 14 + j))
        a("v_cvt_pk_bf16_f32 v%d, v10, v11" % (24 + 2 * q)); a("v_cvt_pk_bf16_f32 v%d, v12, v13" % (25 + 2 * q))
    a("s_nop 1")
    a("v_permlane32_swap_b32 v24, v26"); a("v_permlane32_swap_b32 v25, v27")
    a("s_mul_i32 s16, s12, %d" % (32 * 3456)); add64(a, 54, 4, "0x%x" % WS['ACT']); add64(a, 54, 54, "s16")
    a("global_store_dwordx4 v56, v[24:27], s[54:55]%s" % SC)
    a("s_lshl_b32 s16, s34, 2"); a("s_add_u32 s31, s31, s16"); a("s_add_u32 s31, s31, 4")
    signal(a, "s31")
    if prof: prof(2)
    a("s_add_u32 s12, s12, %d" % G_GU); a("s_cmp_lt_u32 s12, 64"); a("s_cbranch_scc1 " + top)

def role_dn(a, end, prof=None):
    load_ptr(a, 40, 'Wd'); load_ptr(a, 42, 'out'); a("s_waitcnt lgkmcnt(0)")
    a("s_mul_i32 s16, s70, %d" % (576 * 1280)); a("s_lshl_b32 s17, s72, 8"); a("s_add_u32 s16, s16, s17")
    add64(a, 46, 40, "s16"); add64(a, 48, 46, "128")
    a("s_mov_b32 s74, s42"); a("s_mov_b32 s75, s43")
    load_B(a, 576, 46, 48, 1280, False)
    n, per = a_dma_setup(a, 576, 3456)
    a("v_and_b32 v12, 31, v2"); a("v_mul_u32_u24 v12, 1280, v12"); a("v_lshrrev_b32 v13, 5, v2"); a("v_lshlrev_b32 v13, 4, v13")
    a("s_lshl_b32 s20, s72, 8"); a("s_lshl_b32 s21, s10, 6"); a("s_add_u32 s20, s20, s21"); a("v_add3_u32 v56, v12, v13, s20")
    a("v_lshlrev_b32 v57, 4, v2"); a("s_lshl_b32 s20, s10, 12"); a("v_add_u32 v57, s20, v57")
    a("s_mov_b32 s12, s71")
    top = a.uid("Ldn"); a.label(top)
    if prof: prof(0)
    a("s_lshl_b32 s31, s12, 7"); a("s_lshl_b32 s16, s70, 2"); a("s_add_u32 s31, s31, s16"); a("s_add_u32 s31, s31, 0x%x" % (SEGF0 + 12))
    wait_deps(a, [lambda f: poll(a, "s31", "9", f)], end)
    if prof: prof(1)
    a("s_mul_i32 s16, s12, %d" % (32 * 3456)); a("s_mul_i32 s17, s70, 1152"); a("s_add_u32 s16, s16, s17")
    add64(a, 50, 4, "0x%x" % WS['ACT']); add64(a, 50, 50, "s16")
    a_dma(a, n, per, 50)
    sg_mfma(a, 576, True)
    a("s_mul_i32 s16, s12, 5"); a("s_add_u32 s16, s16, s72"); a("s_mul_i32 s16, s16, %d" % (3 * 16384))
    add64(a, 52, 4, "0x%x" % DPART); add64(a, 52, 52, "s16")
    a("s_lshl_b32 s17, s70, 14"); add64(a, 54, 52, "s17")
    for i in range(4): a("global_store_dwordx4 v57, v[%d:%d], s[54:55] offset:%d%s" % (64 + 4 * i, 67 + 4 * i, i * 1024, SC))
    a("s_lshl_b32 s31, s12, 7"); a("s_lshl_b32 s16, s72, 2"); a("s_add_u32 s31, s31, s16"); a("s_add_u32 s31, s31, 0x%x" % DND0)
    signal(a, "s31", "s33")
    nl = a.uid("Lnl")
    a("s_cmp_lg_u32 s33, 2"); a("s_cbranch_scc1 " + nl)
    for k in range(3):
        a("s_mov_b32 s17, %d" % (k * 16384)); add64(a, 54, 52, "s17")
        for i in range(4): a("global_load_dwordx4 v[%d:%d], v57, s[54:55] offset:%d%s" % (96 + 16 * k + 4 * i, 99 + 16 * k + 4 * i, i * 1024, SC))
    a("s_mul_i32 s16, s12, %d" % (32 * 1280)); add64(a, 50, 4, "0x%x" % WS['H']); add64(a, 50, 50, "s16"); add64(a, 54, 74, "s16")
    for qp in range(2): a("global_load_dwordx4 v[%d:%d], v56, s[50:51] offset:%d%s" % (144 + 4 * qp, 147 + 4 * qp, qp * 32, SC))
    a("s_waitcnt vmcnt(0)")
    for i in range(16):
        a("v_add_f32 v%d, v%d, v%d" % (96 + i, 96 + i, 112 + i)); a("v_add_f32 v%d, v%d, v%d" % (96 + i, 96 + i, 128 + i))
    for qp in range(2):
        b = 96 + 8 * qp
        a("v_cvt_pk_bf16_f32 v24, v%d, v%d" % (b, b + 1)); a("v_cvt_pk_bf16_f32 v25, v%d, v%d" % (b + 2, b + 3))
        a("v_cvt_pk_bf16_f32 v26, v%d, v%d" % (b + 4, b + 5)); a("v_cvt_pk_bf16_f32 v27, v%d, v%d" % (b + 6, b + 7))
        a("s_nop 1")
        a("v_permlane32_swap_b32 v24, v26"); a("v_permlane32_swap_b32 v25, v27")
        for i in range(4):
            h = 144 + 4 * qp + i
            a("v_lshlrev_b32 v10, 16, v%d" % (24 + i)); a("v_and_b32 v11, 0xffff0000, v%d" % (24 + i))
            a("v_lshlrev_b32 v12, 16, v%d" % h); a("v_and_b32 v13, 0xffff0000, v%d" % h)
            a("v_add_f32 v10, v10, v12"); a("v_add_f32 v11, v11, v13")
            a("v_cvt_pk_bf16_f32 v%d, v10, v11" % (28 + i))
        a("global_store_dwordx4 v56, v[28:31], s[54:55] offset:%d" % (qp * 32))
        a("s_nop 1")
    a.label(nl)
    if prof: prof(2)
    a("s_add_u32 s12, s12, %d" % G_DN); a("s_cmp_lt_u32 s12, 64"); a("s_cbranch_scc1 " + top)

def role_ln(a, end, prof=None):
    load_ptr(a, 40, 'x')
    add64(a, 42, 4, "0x%x" % WS['HACC']); add64(a, 44, 4, "0x%x" % WS['H']); add64(a, 46, 4, "0x%x" % WS['HN'])
    a("v_lshrrev_b32 v12, 5, v2"); a("v_and_b32 v13, 31, v2")
    a("s_lshl_b32 s20, s70, 3"); a("s_lshl_b32 s21, s10, 1"); a("s_add_u32 s20, s20, s21"); a("v_add_u32 v12, s20, v12")
    a("v_mul_u32_u24 v14, 2560, v12"); a("v_lshlrev_b32 v15, 4, v13"); a("v_add_u32 v14, v14, v15")
    a("v_mul_u32_u24 v16, 1280, v12"); a("v_lshlrev_b32 v15, 3, v13"); a("v_add_u32 v16, v16, v15")
    a("s_waitcnt lgkmcnt(0)")
    a("s_mov_b32 s12, s71")
    top = a.uid("Lln"); a.label(top)
    if prof: prof(0)
    a("s_mul_i32 s16, s12, %d" % (32 * 1280)); a("s_mul_i32 s17, s12, %d" % (32 * 2560))
    add64(a, 50, 40, "s16"); add64(a, 52, 42, "s17"); add64(a, 54, 44, "s16"); add64(a, 56, 46, "s16")
    for c in range(5): a("global_load_dwordx2 v[%d:%d], v16, s[50:51] offset:%d" % (60 + 2 * c, 61 + 2 * c, c * 256))
    a("s_lshl_b32 s31, s12, 7"); a("s_add_u32 s31, s31, 0x%x" % (SEGF0 + 4))
    wait_deps(a, [lambda f: poll(a, "s31", "40", f)], end)
    if prof: prof(1)
    for c in range(5): a("global_load_dwordx4 v[%d:%d], v14, s[52:53] offset:%d%s" % (40 + 4 * c, 43 + 4 * c, c * 512, SC))
    a("s_waitcnt vmcnt(0)")
    b = 40
    for i in range(10):
        x = 60 + i; f0, f1 = b + 2 * i, b + 2 * i + 1
        a("v_cvt_pk_bf16_f32 v20, v%d, v%d" % (f0, f1))
        a("v_lshlrev_b32 v21, 16, v20"); a("v_and_b32 v22, 0xffff0000, v20")
        a("v_lshlrev_b32 v23, 16, v%d" % x); a("v_and_b32 v24, 0xffff0000, v%d" % x)
        a("v_add_f32 v21, v21, v23"); a("v_add_f32 v22, v22, v24")
        a("v_cvt_pk_bf16_f32 v%d, v21, v22" % x)
        a("v_lshlrev_b32 v%d, 16, v%d" % (f0, x)); a("v_and_b32 v%d, 0xffff0000, v%d" % (f1, x))
    for c in range(5): a("global_store_dwordx2 v16, v[%d:%d], s[54:55] offset:%d%s" % (60 + 2 * c, 61 + 2 * c, c * 256, SC))
    def sum32(t):
        for d in ("quad_perm:[1,0,3,2]", "quad_perm:[2,3,0,1]", "row_half_mirror", "row_mirror"):
            a("s_nop 1")
            a("v_add_f32_dpp v%d, v%d, v%d %s row_mask:0xf bank_mask:0xf" % (t, t, t, d))
        a("v_mov_b32 v25, v%d" % t); a("s_nop 1")
        a("v_permlane16_swap_b32 v%d, v25" % t); a("v_add_f32 v%d, v%d, v25" % (t, t))
    a("v_add_f32 v20, v%d, v%d" % (b, b + 1)); a("v_add_f32 v21, v%d, v%d" % (b + 2, b + 3))
    for i in range(4, 20, 2): a("v_add_f32 v20, v20, v%d" % (b + i)); a("v_add_f32 v21, v21, v%d" % (b + i + 1))
    a("v_add_f32 v20, v20, v21")
    sum32(20)
    a("v_mul_f32 v20, 0x3acccccd, v20")
    for i in range(20): a("v_sub_f32 v%d, v%d, v20" % (b + i, b + i))
    a("v_mul_f32 v21, v%d, v%d" % (b, b)); a("v_mul_f32 v22, v%d, v%d" % (b + 1, b + 1))
    for i in range(2, 20, 2): a("v_fmac_f32 v21, v%d, v%d" % (b + i, b + i)); a("v_fmac_f32 v22, v%d, v%d" % (b + i + 1, b + i + 1))
    a("v_add_f32 v21, v21, v22")
    sum32(21)
    a("v_mov_b32 v22, 0x3727c5ac"); a("v_fmac_f32 v22, 0x3acccccd, v21"); a("v_rsq_f32 v22, v22"); a("s_nop 0")
    for i in range(20): a("v_mul_f32 v%d, v%d, v22" % (b + i, b + i))
    for i in range(10): a("v_cvt_pk_bf16_f32 v%d, v%d, v%d" % (70 + i, b + 2 * i, b + 2 * i + 1))
    for c in range(5): a("global_store_dwordx2 v16, v[%d:%d], s[56:57] offset:%d%s" % (70 + 2 * c, 71 + 2 * c, c * 256, SC))
    a("s_add_u32 s31, s31, 4")
    signal(a, "s31")
    if prof: prof(2)
    a("s_add_u32 s12, s12, %d" % G_LN); a("s_cmp_lt_u32 s12, 64"); a("s_cbranch_scc1 " + top)
```

```python
import sys
from asmlib import *
from k_ln import *
from k_gemm import *
from k_attn import *

HEADER = open("sequential_preLN__memory_aug_recurrent_mem_tr__swiglu_ffn__prompt.s.ref").read().split("; Override")[0]

def build(stages, out):
    a = Asm()
    launches = []; descs = []
    a.raw('.amdgcn_target "amdgcn-amd-amdhsa--gfx950"')
    a.raw(".text")
    for st in stages:
        if st == 'ln1':
            descs.append(gen_ln(a, "ln1_kernel", ('arg', 'x'), WS['XN'])); launches.append(("ln1_kernel", 512, 256, 0))
        elif st == 'qkv':
            descs.append(gen_qkv(a, "qkv_kernel")); launches.append(("qkv_kernel", 1536, 256, 131072))
        elif st == 'chain':
            import k_chain13 as k_chain
            descs.append(k_chain.gen_chain(a, "chain_kernel", **CHAIN_KW)); launches.append(("chain_kernel", 256, 256, 163840))
        elif st == 'prep':
            import k_mega
            descs.append(k_mega.gen_prep(a, "prep_kernel")); launches.append(("prep_kernel", 512, 256, 0))
        elif st == 'mega':
            import k_mega
            descs.append(k_mega.gen_mega(a, "mega_kernel", **CHAIN_KW)); launches.append(("mega_kernel", 256, 256, 163840))
        elif st == 'attn':
            descs.append(gen_attn(a, "attn_kernel")); launches.append(("attn_kernel", 512, 256, 0))
        elif st == 'wo':
            descs.append(gen_wo(a, "wo_kernel")); launches.append(("wo_kernel", 80, 256, 131072))
        elif st == 'ln2':
            descs.append(gen_ln(a, "ln2_kernel", ('ws', WS['H']), WS['HN'])); launches.append(("ln2_kernel", 512, 256, 0))
        elif st == 'gu':
            descs.append(gen_gu(a, "gu_kernel")); launches.append(("gu_kernel", 432, 256, 131072))
        elif st == 'down':
            descs.append(gen_down(a, "down_kernel")); launches.append(("down_kernel", 80, 256, 131072))
    hdr = HEADER
    for (n, g, b, l) in launches:
        hdr += "; @launch kernel=%s grid=(%d,1,1) block=(%d,1,1) lds=%d\n" % (n, g, b, l)
    txt = hdr + a.text() + '.section .rodata,"a"\n' + "".join(".p2align 6\n" + d for d in descs)
    open(out, "w").write(txt)

CHAIN_KW = {}
if __name__ == "__main__":
    for kv in sys.argv[3:]:
        k, v = kv.split("="); CHAIN_KW[k] = int(v)
    build(sys.argv[2].split(","), sys.argv[1])
```
